```python
import torch

def _softmax(x, axis=-1):
    return torch.softmax(x, dim=axis)

def _gelu(x):
    return torch.nn.functional.gelu(x, approximate='tanh')

def _silu(x):
    return torch.nn.functional.silu(x)

def _sigmoid(x):
    return torch.sigmoid(x)

def _layernorm(x, axis=-1, eps=1e-05):
    m = x.mean(dim=axis, keepdim=True)
    v = x.var(dim=axis, keepdim=True, unbiased=False)
    return (x - m) / torch.sqrt(v + eps)

def _scatter_add(tgt, idx, src, axis=0):
    return tgt.clone().index_add_(axis, idx, src)

def _segment_sum(src, seg, n):
    out = torch.zeros((n,) + src.shape[1:], dtype=src.dtype)
    return out.index_add_(0, seg, src)

def _pad(x, pw):
    flat = tuple((v for pair in reversed(pw) for v in pair))
    return torch.nn.functional.pad(x, flat)
kernel_name = 'interleave_layers__memory_aug_recurrent_mem_tr__mixer_token_mlp__prompt'

def setup_inputs():

    _w = lambda a: (lambda t: t.to(torch.bfloat16) if t.is_floating_point() else t)(torch.as_tensor(a))

    def _A_setup():
        B, S, Dm = (1, 2048, 640)
        H, Dh = (32, 192)
        M, seg = (8, 32)
        seg = min(seg, S)
        S = S // seg * seg
        return {'x': _w((lambda *s: torch.randn(*s, dtype=torch.bfloat16) * 0.05)(B, S, Dm)), 'mem0': _w((lambda *s: torch.randn(*s, dtype=torch.bfloat16) * 0.2)(B, M, Dm)), 'Wq': _w((lambda *s: torch.randn(*s, dtype=torch.bfloat16) * 0.8)(Dm, H, Dh) * Dm ** (-0.5)), 'Wk': _w((lambda *s: torch.randn(*s, dtype=torch.bfloat16) * 0.8)(Dm, H, Dh) * Dm ** (-0.5)), 'Wv': _w((lambda *s: torch.randn(*s, dtype=torch.bfloat16) * 0.2)(Dm, H, Dh) * Dm ** (-0.5)), 'Wo': _w((lambda *s: torch.randn(*s, dtype=torch.bfloat16) * 0.2)(H, Dh, Dm) * (H * Dh) ** (-0.5)), 'seg_len': seg}
    _A_in = _A_setup()

    def _B_setup():
        B, S, D, F = (1, 2048, 640, 1536)
        return {'x': _w((lambda *s: torch.randn(*s, dtype=torch.bfloat16) * 0.05)(B, S, D)), 'w1': _w((lambda *s: torch.randn(*s, dtype=torch.bfloat16) * 0.2)(S, F) * S ** (-0.5)), 'b1': _w((lambda *s: torch.randn(*s, dtype=torch.bfloat16) * 3.2)(F) * 0.02), 'w2': _w((lambda *s: torch.randn(*s, dtype=torch.bfloat16) * 0.1)(F, S) * F ** (-0.5)), 'b2': _w((lambda *s: torch.randn(*s, dtype=torch.bfloat16) * 0.2)(S) * 0.02)}
    _B_in = _B_setup()
    return {'A_x': _A_in['x'], 'A_mem0': _A_in['mem0'], 'A_Wq': _A_in['Wq'], 'A_Wk': _A_in['Wk'], 'A_Wv': _A_in['Wv'], 'A_Wo': _A_in['Wo'], 'A_seg_len': _A_in['seg_len'], 'B_x': _B_in['x'], 'B_w1': _B_in['w1'], 'B_b1': _B_in['b1'], 'B_w2': _B_in['w2'], 'B_b2': _B_in['b2']}

def reference(A_x, A_mem0, A_Wq, A_Wk, A_Wv, A_Wo, A_seg_len, B_x, B_w1, B_b1, B_w2, B_b2):

    def _A_ref(x, mem0, Wq, Wk, Wv, Wo, seg_len):
        B, S, Dm = x.shape
        H, Dh = (Wq.shape[1], Wq.shape[2])
        M = mem0.shape[1]
        scale = Dh ** (-0.5)
        n_seg = S // seg_len
        L = M + seg_len
        idx = torch.arange(L)
        mask = (idx[:, None] < M) | (idx[:, None] >= idx[None, :])
        mem = mem0
        outs = []
        for s in range(n_seg):
            xs = x[:, s * seg_len:(s + 1) * seg_len, :].clone()
            h = torch.concatenate([mem, xs], axis=1)
            q = torch.einsum('btd,dhe->bhte', h, Wq)
            k = torch.einsum('btd,dhe->bhte', h, Wk)
            v = torch.einsum('btd,dhe->bhte', h, Wv)
            scores = torch.einsum('bhqe,bhke->bhqk', q, k) * scale
            scores = torch.where(mask[None, None], scores, -1000000000.0)
            p = _softmax(scores, axis=-1)
            o = torch.einsum('bhqk,bhke->bhqe', p, v)
            o = torch.einsum('bhte,hed->btd', o, Wo)
            mem = o[:, :M, :].clone()
            outs.append(o[:, M:, :])
        return torch.concatenate(outs, axis=1)

    def _B_ref(x, w1, b1, w2, b2):
        B, S, D = x.shape
        h = _layernorm(x, axis=-1)
        u = torch.einsum('bsd,sf->bdf', h, w1) + b1
        u = _gelu(u)
        y = torch.einsum('bdf,fs->bds', u, w2) + b2
        return (lambda x, *d: x.permute(*d))(y, 0, 2, 1)
    x = A_x
    x = x + _A_ref(_layernorm(x, axis=-1), A_mem0, A_Wq, A_Wk, A_Wv, A_Wo, A_seg_len)
    x = x + _B_ref(_layernorm(x, axis=-1), B_w1, B_b1, B_w2, B_b2)
    x = x + _A_ref(_layernorm(x, axis=-1), A_mem0, A_Wq, A_Wk, A_Wv, A_Wo, A_seg_len)
    x = x + _B_ref(_layernorm(x, axis=-1), B_w1, B_b1, B_w2, B_b2)
    return x
```

```python
import re

class Asm:
    def __init__(self):
        self.lines = []
        self.uid = 0
    def e(self, s):
        for ln in s.split('\n'):
            ln = ln.split(';')[0].strip() if not ln.strip().startswith(';') else ''
            if ln: self.lines.append(ln)
    __call__ = e
    def lab(self, base='L'):
        self.uid += 1
        return f'{base}_{self.uid}'
    def nop(self, n):
        while n > 0:
            k = min(n, 16); self.e(f's_nop {k-1}'); n -= k

def R(kind, lo, n=1):
    return f'{kind}{lo}' if n == 1 else f'{kind}[{lo}:{lo+n-1}]'
def v(lo, n=1): return R('v', lo, n)
def a(lo, n=1): return R('a', lo, n)
def s(lo, n=1): return R('s', lo, n)
def u(lo, n=1):
    if lo < 256:
        assert lo + n <= 256, (lo, n)
        return v(lo, n)
    assert lo + n <= 512
    return a(lo - 256, n)

_reg_re = re.compile(r'^(-|abs\(|\|)?([vas])(?:(\d+)|\[(\d+):(\d+)\])\)?\|?$')
def regs_of(op):
    op = op.strip()
    if op == 'vcc': return {('s', 106), ('s', 107)}
    if op == 'vcc_lo': return {('s', 106)}
    if op == 'vcc_hi': return {('s', 107)}
    if op == 'exec': return {('s', 126), ('s', 127)}
    if op == 'm0': return {('s', 124)}
    op2 = op.replace('-abs(', 'abs(')
    m = _reg_re.match(op2)
    if not m: return set()
    k = m.group(2)
    if m.group(3) is not None: lo = hi = int(m.group(3))
    else: lo, hi = int(m.group(4)), int(m.group(5))
    return {(k, i) for i in range(lo, hi + 1)}

TRANS = ('v_exp_f32', 'v_log_f32', 'v_rcp_f32', 'v_rsq_f32', 'v_sqrt_f32', 'v_sin_f32', 'v_cos_f32', 'v_rcp_iflag_f32')
VCC = {('s', 106), ('s', 107)}

class Ins:
    __slots__ = ('text', 'op', 'kind', 'w', 'r', 'srcc', 'ab', 'passes', 'states', 'dpp', 'wide_data', 'ldsdma', 'trans', 'perm', 'rdlane', 'target', 'uncond', 'islabel', 'loaddst')
    def __init__(self, text):
        self.text = text
        self.w = set(); self.r = set(); self.srcc = set(); self.ab = set(); self.passes = 0; self.states = 1
        self.dpp = False; self.wide_data = set(); self.ldsdma = False; self.trans = False; self.perm = False; self.rdlane = False
        self.target = None; self.uncond = False; self.islabel = False; self.loaddst = set()
        if text.endswith(':'):
            self.islabel = True; self.kind = 'label'; self.op = text[:-1]; self.states = 0; return
        if text.startswith('.'):
            self.kind = 'dir'; self.op = text; self.states = 0; return
        parts = text.split(None, 1)
        op = parts[0]; self.op = op
        rest = parts[1] if len(parts) > 1 else ''
        rest = re.sub(r'(op_sel|op_sel_hi|neg_lo|neg_hi|quad_perm):\[[^\]]*\]', r'\1', rest)
        ops = [x.strip() for x in rest.split(',')] if rest else []
        mods = ''
        if ops:
            toks = ops[-1].split()
            if len(toks) > 1:
                ops[-1] = toks[0]; mods = ' '.join(toks[1:])
        RS = [regs_of(o) for o in ops]
        base = re.sub(r'_(e32|e64|dpp|sdwa)$', '', op)
        if op.startswith('v_mfma') or op.startswith('v_smfmac'):
            self.kind = 'mfma'
            self.passes = 8 if '32x32' in op else 4
            self.w = RS[0]; self.ab = RS[1] | RS[2]
            if op.startswith('v_smfmac'):
                self.srcc = RS[0]; self.ab |= RS[3]
            else:
                self.srcc = RS[3]
            self.r = self.ab | self.srcc
        elif op.startswith('v_'):
            self.kind = 'valu'
            self.dpp = any(k in mods for k in ('row_', 'quad_perm', 'wave_')) or op.endswith('_dpp')
            self.trans = base in TRANS
            if base.startswith('v_permlane') or base == 'v_swap_b32':
                self.w = RS[0] | RS[1]; self.r = RS[0] | RS[1]; self.perm = base.startswith('v_permlane')
            elif base in ('v_add_co_u32', 'v_sub_co_u32', 'v_addc_co_u32', 'v_subb_co_u32', 'v_div_scale_f32', 'v_mad_u64_u32'):
                self.w = RS[0] | RS[1]
                for x in RS[2:]: self.r |= x
            elif base == 'v_nop':
                pass
            else:
                self.w = RS[0]
                for x in RS[1:]: self.r |= x
                if base in ('v_fmac_f32', 'v_pk_fmac_f16', 'v_dot2c_f32_bf16', 'v_writelane_b32') or self.dpp: self.r |= RS[0]
                if base in ('v_readfirstlane_b32', 'v_readlane_b32'): self.rdlane = True
        elif op.startswith('ds_'):
            self.kind = 'ds'
            if op.startswith('ds_read') or 'permute' in op or 'swizzle' in op or '_rtn' in op:
                self.loaddst = RS[0]
                for x in RS[1:]: self.r |= x
            else:
                for x in RS: self.r |= x
        elif op.startswith('buffer_') or op.startswith('global_'):
            self.kind = 'vmem'
            ml = mods.split()
            if op in ('buffer_inv', 'buffer_wbl2'): pass
            elif 'lds' in ml or '_lds_' in op:
                self.ldsdma = True
                for x in RS: self.r |= x
            elif '_load' in op:
                self.loaddst = RS[0]
                for x in RS[1:]: self.r |= x
            elif '_store' in op:
                for x in RS: self.r |= x
                if 'x3' in op or 'x4' in op:
                    self.wide_data = RS[0] if op.startswith('buffer_') else RS[1]
            elif '_atomic' in op:
                for x in RS: self.r |= x
                if 'sc0' in ml: self.loaddst = RS[0]
        elif op.startswith('s_'):
            self.kind = 'salu'
            if op == 's_nop': self.states = int(ops[0], 0) + 1
            elif op.startswith('s_cbranch') or op == 's_branch':
                self.target = ops[0]; self.uncond = op == 's_branch'
            elif op == 's_endpgm': self.uncond = True
            elif op.startswith('s_cmp') or op.startswith('s_waitcnt') or op in ('s_barrier', 's_setprio', 's_sleep') or op.startswith('s_bitcmp'):
                for x in RS: self.r |= x
            else:
                if RS: self.w = RS[0]
                for x in RS[1:]: self.r |= x
                if 'saveexec' in op: self.w = self.w | {('s', 126), ('s', 127)}
        else:
            raise ValueError('cannot parse: ' + text)

def need(p, c):
    n = 0
    vw = {x for x in p.w if x[0] != 's'}
    sw = {x for x in p.w if x[0] == 's'}
    if p.kind == 'valu':
        if c.kind == 'mfma' and vw & c.r: n = max(n, 2)
        if c.kind == 'valu':
            if (c.perm or c.dpp) and vw & c.r: n = max(n, 2)
            if c.rdlane and vw & c.r: n = max(n, 1)
            if p.trans and vw & c.r: n = max(n, 1)
            if sw & c.r: n = max(n, 4 if c.rdlane or c.op.startswith('v_writelane') else 2)
        if c.kind == 'vmem' and sw & c.r: n = max(n, 5)
    if p.kind == 'mfma':
        P = p.passes
        if c.kind == 'mfma':
            if p.w & c.ab: n = max(n, P + 4)
            if p.w & c.srcc and not (p.w == c.srcc and p.passes == c.passes): n = max(n, P + 2)
            if p.w & c.w and not (p.w & c.srcc): n = max(n, P + 2)
        elif c.kind == 'valu':
            if p.w & (c.r | c.w): n = max(n, P + 4)
            if p.srcc & c.w: n = max(n, P - 1)
        elif c.kind in ('ds', 'vmem'):
            if p.w & (c.r | c.loaddst): n = max(n, P + 4)
    if p.wide_data:
        if c.kind == 'valu' and p.wide_data & c.w: n = max(n, 2)
        elif p.wide_data & (c.w | c.loaddst): n = max(n, 1)
    if p.kind == 'salu' and ('s', 124) in p.w and c.ldsdma: n = max(n, 1)
    return n

def fix_hazards(lines, verbose=False):
    ins = [Ins(t) for t in lines]
    MAXD = 13
    inserted = 0
    changed = True
    while changed:
        changed = False
        labels = {x.op: i for i, x in enumerate(ins) if x.islabel}
        jumps = {}
        for i, x in enumerate(ins):
            if x.target is not None: jumps.setdefault(labels[x.target], []).append(i)
        out = []
        pads = {}
        for i, c in enumerate(ins):
            if c.kind in ('label', 'dir') or (c.kind == 'salu'): continue
            worst = 0
            stack = [(i - 1, 0)]
            seen = set()
            while stack:
                j, d = stack.pop()
                while j >= 0 and d < MAXD:
                    if (j, d) in seen: break
                    seen.add((j, d))
                    p = ins[j]
                    if p.islabel:
                        for src in jumps.get(j, []): stack.append((src, d))
                        if j > 0 and ins[j-1].uncond: break
                        j -= 1; continue
                    k = need(p, c) - d
                    if k > worst: worst = k
                    d += p.states + pads.get(j, 0)
                    j -= 1
                    if j >= 0 and ins[j].uncond: break
            if worst > 0:
                pads[i] = worst
        if pads:
            for i, c in enumerate(ins):
                if i in pads:
                    out.append(Ins(f's_nop {pads[i]-1}')); inserted += pads[i]
                    if verbose: print('pad', pads[i], 'before', c.text)
                out.append(c)
            ins = out
            changed = True
    return [x.text for x in ins], inserted

def kernel_text(name, A, verbose=False):
    lines, n = fix_hazards(A.lines, verbose)
    body = '\n'.join(l if l.endswith(':') else ' ' + l for l in lines)
    return f'.globl {name}\n.p2align 8\n.type {name},@function\n{name}:\n{body}\n'

def kd(name, total=512, accum=256, sgpr=102):
    return f'''.amdhsa_kernel {name}
  .amdhsa_next_free_vgpr {total}
  .amdhsa_next_free_sgpr {sgpr}
  .amdhsa_accum_offset {accum}
  .amdhsa_group_segment_fixed_size 0
  .amdhsa_kernarg_size 120
  .amdhsa_user_sgpr_count 2
  .amdhsa_user_sgpr_kernarg_segment_ptr 1
  .amdhsa_system_sgpr_workgroup_id_x 1
  .amdhsa_float_denorm_mode_32 3
.end_amdhsa_kernel
'''
```

```python
from asmlib import *

KA_X, KA_MEM0, KA_WQ, KA_WK, KA_WV, KA_WO = 0, 8, 16, 24, 32, 40
KA_W1, KA_B1, KA_W2, KA_B2, KA_OUT, KA_DBG, KA_WS = 64, 72, 80, 88, 96, 104, 112
SZ_X = 2048*640*2
SZ_W = 640*6144*2
SZ_W1 = 2048*1536*2

WS_SIZE = 268435456
def _al(x, a=1 << 16): return (x + a - 1) // a * a
_o = 0
def _alloc(n):
    global _o
    r = _o; _o = _al(_o + n); return r
O_MB   = _alloc(1 << 21)
O_H    = _alloc(SZ_X)
O_X1   = _alloc(SZ_X)
O_X2   = _alloc(SZ_X)
O_H2T  = _alloc(SZ_X)
O_G    = _alloc(640*1536*2)
O_W1T  = _alloc(SZ_W1)
O_W2T  = _alloc(SZ_W1)
O_BM   = _alloc(20*1310720)
O_KX   = _alloc(64*32*12288)
O_VX   = _alloc(64*32*12288)
O_VO   = _alloc(64*1310720)
O_YZ   = _alloc(64*80*4096)
O_KM   = _alloc(64*32*3072)
O_PX   = _alloc(64*32*2560)
O_END  = _o
assert O_END <= WS_SIZE
MB_FLAGS = 1 << 20
F_K, F_V, F_O, F_M = 0, 32, 64, 96
NFLAGS = 128

SPIN = 200000

WS = 's[4:7]'
def srd(A, sreg, ka, size):
    A(f's_load_dwordx2 s[{sreg}:{sreg+1}], s[0:1], {ka}')
    A(f's_mov_b32 s{sreg+2}, {size}')
    A(f's_mov_b32 s{sreg+3}, 0x20000')

def lane_expr(A, dst, terms, const=0, src='v0', tmp='v255', st='s101'):
    first = True
    if isinstance(const, str) or const != 0 or not terms:
        A(f'v_mov_b32 {dst}, {const}'); first = False
    for (sh, bits, mul) in terms:
        if mul == 0: continue
        t = tmp
        A(f'v_bfe_u32 {t}, {src}, {sh}, {bits}')
        assert 0 < mul < (1 << 24)
        if mul & (mul - 1) == 0:
            k = mul.bit_length() - 1
            if first: A(f'v_lshlrev_b32 {dst}, {k}, {t}')
            else: A(f'v_lshl_add_u32 {dst}, {t}, {k}, {dst}')
        else:
            if first: A(f'v_mul_u32_u24 {dst}, {mul}, {t}')
            else:
                A(f's_mov_b32 {st}, {mul}')
                A(f'v_mad_u32_u24 {dst}, {t}, {st}, {dst}')
        first = False

def wave_id(A, sdst, tmp='v255'):
    A(f'v_lshrrev_b32 {tmp}, 6, v0')
    A(f'v_readfirstlane_b32 {sdst}, {tmp}')

class VM:
    def __init__(self, A): self.A = A; self.q = []
    def op(self, text, tag=None):
        self.A(text); self.q.append(tag)
    def count_after(self, tag):
        idx = max(i for i, t in enumerate(self.q) if t == tag)
        return len(self.q) - 1 - idx
    def wait(self, tag):
        if tag not in self.q: return
        n = self.count_after(tag)
        assert n <= 63, n
        self.A(f's_waitcnt vmcnt({n})')
        self.q = self.q[len(self.q) - n:]
    def drain(self):
        self.A('s_waitcnt vmcnt(0)'); self.q = []

def interleave(A, main, fill, start=0, per=1):
    def em(x):
        if callable(x): x()
        else: A(x)
    fill = list(fill)
    for i, m in enumerate(main):
        em(m)
        if i >= start:
            for _ in range(per):
                if fill: em(fill.pop(0))
    for f in fill: em(f)

def flag_wait(A, sbase, soff, need, scur, fail, cnt='s100'):
    done = A.lab('fw_done'); lp = A.lab('fw')
    A(f's_cmp_gt_u32 {scur}, {need}')
    A(f's_cbranch_scc1 {done}')
    A(f's_mov_b32 {cnt}, 0')
    A(f'{lp}:')
    A(f's_load_dword {scur}, s[{sbase}:{sbase+1}], {soff} glc')
    A(f's_add_u32 {cnt}, {cnt}, 1')
    A(f's_cmp_gt_u32 {cnt}, {SPIN}')
    A(f's_cbranch_scc1 {fail}')
    A('s_waitcnt lgkmcnt(0)')
    A(f's_cmp_gt_u32 {scur}, {need}')
    A(f's_cbranch_scc0 {lp}')
    A(f'{done}:')

def lane0_off(A, dst, soff):
    A(f'v_mov_b32 {dst}, 0x80000000'); A(f'v_mov_b32 v255, {soff}')
    A('v_cmp_eq_u32 vcc, 0, v0'); A(f'v_cndmask_b32 {dst}, {dst}, v255, vcc')
```

```python
from common import *

def gk(A, MT, NT, KS, lda, ldb, depth, swave, pre_wait=None):
    ACC = 32; RING = 128
    per = MT + NT
    assert ACC + 4*MT*NT <= RING and RING + depth*per*4 <= 512 and depth*per <= 63
    def reg(ks, i): return RING + ((ks % depth)*per + i)*4
    def loads(ks):
        o = []
        for nt in range(NT): o.append(lambda nt=nt: ldb(ks, nt, u(reg(ks, MT+nt), 4)))
        for mt in range(MT): o.append(lambda mt=mt: lda(ks, mt, u(reg(ks, mt), 4)))
        return o
    for ks in range(min(depth, KS)):
        for f in loads(ks): f()
    for ks in range(KS):
        issued = min(KS, max(depth, ks + depth - 1))
        A(f's_waitcnt vmcnt({(issued - ks - 1)*per})')
        mf = []
        for mt in range(MT):
            for nt in range(NT):
                d = v(ACC + (mt*NT+nt)*4, 4)
                mf.append(f'v_mfma_f32_16x16x32_bf16 {d}, {u(reg(ks,mt),4)}, {u(reg(ks,MT+nt),4)}, {d if ks else 0}')
        nk = ks + depth - 1
        fill = loads(nk) if (ks >= 1 and nk < KS) else []
        interleave(A, mf, fill)
    pitch = MT*64 + 16
    wsz = 16*NT*pitch
    A(f's_mul_i32 s86, {swave}, {wsz}')
    lane_expr(A, 'v1', [(0, 4, pitch), (4, 2, 16)], 's86')
    for mt in range(MT):
        for nt in range(NT):
            A(f'ds_write_b128 v1, {v(ACC+(mt*NT+nt)*4,4)} offset:{nt*16*pitch + mt*64}')
    A('s_waitcnt lgkmcnt(0)')
    A('s_barrier')
    return pitch, wsz

def reduce_item(A, vaddr, wsz, dst, tmp):
    for w in range(4):
        r = dst if w == 0 else tmp + 8*(w-1)
        A(f'ds_read_b128 {v(r,4)}, {vaddr} offset:{w*wsz}')
        A(f'ds_read_b128 {v(r+4,4)}, {vaddr} offset:{w*wsz + 16}')
    A('s_waitcnt lgkmcnt(4)')
    for i in range(4): A(f'v_pk_add_f32 {v(dst+2*i,2)}, {v(dst+2*i,2)}, {v(tmp+2*i,2)}')
    A('s_waitcnt lgkmcnt(0)')
    for i in range(4): A(f'v_pk_add_f32 {v(tmp+8+2*i,2)}, {v(tmp+8+2*i,2)}, {v(tmp+16+2*i,2)}')
    for i in range(4): A(f'v_pk_add_f32 {v(dst+2*i,2)}, {v(dst+2*i,2)}, {v(tmp+8+2*i,2)}')

def unpack8(A, src, dst):
    for i in range(4):
        A(f'v_lshlrev_b32 {v(dst+2*i)}, 16, {v(src+i)}')
        A(f'v_and_b32 {v(dst+2*i+1)}, 0xffff0000, {v(src+i)}')

def item_index(A, it, NC, nitems, magic_shift=None):
    A(f'v_add_u32 v20, {256*it}, v0')
    if NC & (NC-1) == 0:
        k = NC.bit_length() - 1
        A(f'v_and_b32 v21, {NC-1}, v20'); A(f'v_lshrrev_b32 v22, {k}, v20')
    else:
        assert NC == 80
        A('v_mul_u32_u24 v22, 820, v20'); A('v_lshrrev_b32 v22, 16, v22')
        A('v_mul_u32_u24 v21, 80, v22'); A('v_sub_u32 v21, v20, v21')
    A(f'v_cmp_gt_u32 vcc, {nitems}, v20')

def oob_unless_vcc(A, reg):
    A('v_mov_b32 v23, 0x80000000')
    A(f'v_cndmask_b32 {reg}, v23, {reg}, vcc')

def task_pz(A):
    lane_expr(A, 'v2', [(3, 1, 16384), (4, 2, 128), (0, 3, 16)])
    lane_expr(A, 'v3', [(3, 1, 4096), (4, 2, 128), (0, 3, 16)])
    lane_expr(A, 'v4', [(4, 2, 512), (0, 4, 16)], 512)
    lane_expr(A, 'v5', [(4, 2, 2560), (0, 4, 16)])
    A('s_mul_i32 s24, s20, 1310720'); A(f's_mul_i32 s25, s22, {10*16384}'); A('s_add_u32 s24, s24, s25')
    A('s_lshl_b32 s25, s21, 12'); A('s_add_u32 s24, s24, s25'); A(f's_add_u32 s24, s24, {O_VO}')
    A(f's_mul_i32 s26, s20, {80*4096}'); A(f's_mul_i32 s25, s22, {10*4096}'); A('s_add_u32 s26, s26, s25')
    A('s_lshl_b32 s25, s21, 10'); A('s_add_u32 s26, s26, s25'); A(f's_add_u32 s26, s26, {O_YZ}')
    A(f's_mul_i32 s27, s20, {32*2560}'); A(f's_mul_i32 s25, s21, {8*2560}'); A('s_add_u32 s27, s27, s25'); A(f's_add_u32 s27, s27, {O_PX}')
    A('s_mul_i32 s28, s20, 40960'); A('s_mul_i32 s25, s22, 5120'); A('s_add_u32 s28, s28, s25')
    A(f's_add_u32 s29, s28, {O_X2}'); A(f's_add_u32 s28, s28, {O_X1}')
    A('v_lshlrev_b32 v6, 4, v0')
    A('v_add_u32 v7, 4096, v6'); A('v_cmp_gt_u32 vcc, 64, v0'); oob_unless_vcc(A, 'v7')
    A(f'buffer_load_dwordx4 v[8:11], v6, {WS}, s29 offen')
    A(f'buffer_load_dwordx4 v[12:15], v7, {WS}, s29 offen')
    def lda(ks, mt, r):
        if ks < 8:
            A(f's_add_u32 s30, s24, {mt*32768}')
            A(f'buffer_load_dwordx4 {r}, v2, {WS}, s30 offen offset:{ks*512}')
        else:
            A(f's_add_u32 s30, s26, {mt*8192}')
            A(f'buffer_load_dwordx4 {r}, v3, {WS}, s30 offen offset:{(ks-8)*512}')
    def ldb(ks, nt, r):
        if ks < 8:
            A(f's_add_u32 s30, s27, {ks*2560}')
            A(f'buffer_load_dwordx4 {r}, v4, {WS}, s30 offen offset:{nt*256}')
        else:
            A(f's_add_u32 s30, s27, {(ks-8)*4*2560}')
            A(f'buffer_load_dwordx4 {r}, v5, {WS}, s30 offen offset:{nt*256}')
    pitch, wsz = gk(A, 5, 2, 10, lda, ldb, 8, 's21')
    for it in range(2):
        sk = A.lab('pzs')
        if it == 1:
            A('s_cmp_lg_u32 s21, 0'); A(f's_cbranch_scc1 {sk}')
        lane_expr(A, 'v16', [(0, 5, pitch), (5, 3, 32)], 256*it)
        reduce_item(A, 'v16', wsz, 32, 40)
        unpack8(A, 8 + 4*it, 64)
        for i in range(4): A(f'v_pk_add_f32 {v(32+2*i,2)}, {v(32+2*i,2)}, {v(64+2*i,2)}')
        for i in range(4): A(f'v_cvt_pk_bf16_f32 {v(72+4*it+i)}, {v(32+2*i)}, {v(33+2*i)}')
        A(f'buffer_store_dwordx4 {v(72+4*it,4)}, {"v6" if it == 0 else "v7"}, {WS}, s28 offen')
        if it == 1: A(f'{sk}:')

def task_g1(A):
    lane_expr(A, 'v2', [(4, 2, 1536*16), (0, 4, 16)])
    lane_expr(A, 'v3', [(4, 2, 640*16), (0, 4, 16)])
    A(f's_mul_i32 s24, s21, {64*1536*16}'); A(f's_mul_i32 s25, s20, {48*16}'); A('s_add_u32 s24, s24, s25'); A(f's_add_u32 s24, s24, {O_W1T}')
    A(f's_mul_i32 s26, s21, {64*640*16}'); A(f's_mul_i32 s25, s22, {80*16}'); A('s_add_u32 s26, s26, s25'); A(f's_add_u32 s26, s26, {O_H2T}')
    A('s_mul_i32 s27, s20, 96')
    A(f's_mul_i32 s28, s20, {6*10240}'); A('s_add_u32 s28, s28, s25'); A(f's_add_u32 s28, s28, {O_G}')
    pitch = 3*64 + 16
    for it in range(2):
        item_index(A, it, 80, 480)
        A('v_lshlrev_b32 v4, 4, v22'); oob_unless_vcc(A, 'v4')
        A(f'buffer_load_dwordx4 {v(8+4*it,4)}, v4, s[8:11], s27 offen')
        A(f'v_mul_u32_u24 {v(6+it)}, 10240, v22'); A(f'v_lshl_add_u32 {v(6+it)}, v21, 4, {v(6+it)}'); oob_unless_vcc(A, v(6+it))
        A(f'v_mul_u32_u24 {v(16+it)}, {pitch}, v21'); A(f'v_lshl_add_u32 {v(16+it)}, v22, 5, {v(16+it)}')
        A(f'v_cndmask_b32 {v(16+it)}, 0, {v(16+it)}, vcc')
    def lda(ks, mt, r):
        if mt == 0: A(f's_add_u32 s30, s24, {ks*4*1536*16}')
        A(f'buffer_load_dwordx4 {r}, v2, {WS}, s30 offen offset:{mt*256}')
    def ldb(ks, nt, r):
        if nt == 0: A(f's_add_u32 s31, s26, {ks*4*640*16}')
        A(f'buffer_load_dwordx4 {r}, v3, {WS}, s31 offen offset:{nt*256}')
    p, wsz = gk(A, 3, 5, 16, lda, ldb, 7, 's21')
    assert p == pitch
    c1 = -2*0.7978845608028654*1.4426950408889634
    c3 = c1*0.044715
    import struct
    f2h = lambda x: hex(struct.unpack('<I', struct.pack('<f', x))[0])
    A(f's_mov_b32 s32, {f2h(c3)}')
    A(f'v_mov_b32 v24, {f2h(c1)}')
    for it in range(2):
        reduce_item(A, v(16+it), wsz, 32, 40)
        unpack8(A, 8 + 4*it, 64)
        for i in range(4): A(f'v_pk_add_f32 {v(32+2*i,2)}, {v(32+2*i,2)}, {v(64+2*i,2)}')
        for i in range(8): A(f'v_mul_f32 {v(40+i)}, {v(32+i)}, {v(32+i)}')
        for i in range(8): A(f'v_fma_f32 {v(40+i)}, {v(40+i)}, s32, v24')
        for i in range(8): A(f'v_mul_f32 {v(40+i)}, {v(40+i)}, {v(32+i)}')
        for i in range(8): A(f'v_exp_f32 {v(40+i)}, {v(40+i)}')
        for i in range(8): A(f'v_add_f32 {v(40+i)}, 1.0, {v(40+i)}')
        for i in range(8): A(f'v_rcp_f32 {v(40+i)}, {v(40+i)}')
        for i in range(8): A(f'v_mul_f32 {v(32+i)}, {v(32+i)}, {v(40+i)}')
        for i in range(4): A(f'v_cvt_pk_bf16_f32 {v(72+4*it+i)}, {v(32+2*i)}, {v(33+2*i)}')
        A(f'buffer_store_dwordx4 {v(72+4*it,4)}, {v(6+it)}, {WS}, s28 offen')

def task_g2(A, final):
    lane_expr(A, 'v2', [(4, 2, 640*16), (0, 4, 16)])
    lane_expr(A, 'v3', [(4, 2, 2048*16), (0, 4, 16)])
    A(f's_mul_i32 s24, s21, {48*640*16}'); A(f's_mul_i32 s25, s22, {80*16}'); A('s_add_u32 s24, s24, s25'); A(f's_add_u32 s24, s24, {O_G}')
    A(f's_mul_i32 s26, s21, {48*2048*16}'); A('s_lshl_b32 s25, s20, 10'); A('s_add_u32 s26, s26, s25'); A(f's_add_u32 s26, s26, {O_W2T}')
    A('s_lshl_b32 s27, s20, 7')
    A(f's_mul_i32 s28, s20, {2*40960}'); A('s_mul_i32 s25, s22, 5120'); A('s_add_u32 s28, s28, s25')
    A(f's_add_u32 s29, s28, {O_X1}'); A(f's_add_u32 s28, s28, {O_X2}')
    if final:
        A(f's_mul_i32 s28, s20, {64*1280}'); A('s_mul_i32 s25, s22, 160'); A('s_add_u32 s28, s28, s25')
    lane_expr(A, 'v4', [(0, 6, 2)])
    A('buffer_load_ushort v5, v4, s[8:11], s27 offen')
    lane_expr(A, 'v6', [(0, 5, 16), (5, 1, 40960), (6, 2, 512)])
    A('v_add_u32 v7, 4096, v6'); A('v_cmp_gt_u32 vcc, 128, v0'); oob_unless_vcc(A, 'v7')
    A(f'buffer_load_dwordx4 v[8:11], v6, {WS}, s29 offen')
    A(f'buffer_load_dwordx4 v[12:15], v6, {WS}, s29 offen offset:2048')
    A(f'buffer_load_dwordx4 v[16:19], v7, {WS}, s29 offen')
    if final: lane_expr(A, 'v24', [(0, 6, 1280), (6, 2, 16)])
    def lda(ks, mt, r):
        if mt == 0: A(f's_add_u32 s30, s24, {ks*4*640*16}')
        A(f'buffer_load_dwordx4 {r}, v2, {WS}, s30 offen offset:{mt*256}')
    def ldb(ks, nt, r):
        if nt == 0: A(f's_add_u32 s31, s26, {ks*4*2048*16}')
        A(f'buffer_load_dwordx4 {r}, v3, {WS}, s31 offen offset:{nt*256}')
    pitch, wsz = gk(A, 5, 4, 12, lda, ldb, 6, 's21')
    A('v_lshlrev_b32 v26, 16, v5'); A('v_mov_b32 v27, v26')
    for it in range(3):
        sk = A.lab('g2s')
        if it == 2:
            A('s_cmp_ge_u32 s21, 2'); A(f's_cbranch_scc1 {sk}')
        lane_expr(A, 'v25', [(0, 6, pitch), (6, 2, 32)], 128*it)
        reduce_item(A, 'v25', wsz, 32, 40)
        unpack8(A, 8 + 4*it, 64)
        for i in range(4): A(f'v_pk_add_f32 {v(32+2*i,2)}, {v(32+2*i,2)}, v[26:27]')
        for i in range(4): A(f'v_pk_add_f32 {v(32+2*i,2)}, {v(32+2*i,2)}, {v(64+2*i,2)}')
        for i in range(4): A(f'v_cvt_pk_bf16_f32 {v(72+4*it+i)}, {v(32+2*i)}, {v(33+2*i)}')
        if final: A(f'buffer_store_dwordx4 {v(72+4*it,4)}, v24, s[12:15], s28 offen offset:{64*it}')
        elif it < 2: A(f'buffer_store_dwordx4 {v(72+4*it,4)}, v6, {WS}, s28 offen offset:{2048*it}')
        else: A(f'buffer_store_dwordx4 {v(72+4*it,4)}, v7, {WS}, s28 offen')
        if it == 2: A(f'{sk}:')
```

```python
from common import *
from workers import *
import struct, math
f2h = lambda x: hex(struct.unpack('<I', struct.pack('<f', x))[0])
CSC = 192 ** -0.5 * math.log2(math.e)
NEG = -1e9 * math.log2(math.e)

SLOT = 131072
PBLK = 2

def xg_reduce(A, op, r, t, steps=(16, 32)):
    for st in steps:
        A(f'v_mov_b32 {v(t)}, {v(r)}')
        A(f'v_permlane{st}_swap_b32 {v(t)}, {v(r)}')
        A(f'{op} {v(r)}, {v(r)}, {v(t)}')

def role_wq(A, fail):
    WB = 256
    load_proj_weights(A, 's[8:11]', 's20', 's21', WB)
    ACC = 64; BOP = 112; PK = 144; KXR = 160; KMR = 208; QB = 2*HB
    A('s_mul_i32 s24, s21, 10240')
    lane_expr(A, 'v9', [(0, 6, 16)], 's24')
    lane_expr(A, 'v10', [(4, 2, 512), (0, 4, 16)])
    proj_out_addr(A, 'v14', 'v15', 's21')
    A(f'v_add_u32 v14, {QB}, v14'); A(f'v_add_u32 v15, {QB}, v15')
    lane_expr(A, 'v16', [(4, 2, 512), (2, 2, 128), (0, 2, 16)])
    lane_expr(A, 'v17', [(4, 2, 128), (0, 3, 16)])
    lane_expr(A, 'v18', [(4, 2, 512), (0, 4, 16), (6, 1, 256)], QB)
    lane_expr(A, 'v19', [(4, 2, 512), (0, 4, 16), (6, 1, 256)], 512)
    lane_expr(A, 'v20', [(4, 1, 8), (0, 4, 16), (6, 1, 256)])
    A('v_and_b32 v21, 32, v0'); A('v_cmp_eq_u32 vcc, 0, v21'); A('v_mov_b32 v21, 0x80000000'); A('v_cndmask_b32 v20, v21, v20, vcc')
    lane_expr(A, 'v21', [(0, 4, 1), (6, 1, 16)]); lane_expr(A, 'v22', [(4, 2, 8)])
    A('v_sub_u32 v21, v21, v22')
    for p in range(8): A(f'v_cmp_le_i32 s[{40+2*p}:{41+2*p}], {p}, v21')
    A(f'v_mov_b32 v23, {f2h(NEG)}'); A(f's_mov_b32 s56, {f2h(CSC)}')
    A('s_mul_i32 s25, s20, 12288'); A(f's_add_u32 s25, s25, {O_KX}')
    A('s_mul_i32 s26, s20, 3072'); A(f's_add_u32 s26, s26, {O_KM}')
    A('s_mul_i32 s27, s20, 2560'); A(f's_add_u32 s27, s27, {O_PX}')
    A('s_lshl_b32 s32, s20, 7'); A(f's_add_u32 s33, s32, {O_MB + MB_FLAGS + F_K*128}'); A(f's_add_u32 s32, s32, {O_MB + MB_FLAGS + F_M*128}')
    A('s_mov_b32 s34, 0'); A('s_mov_b32 s35, 0')
    A(f's_mov_b32 s29, {O_H}'); A('s_mov_b32 s28, 0')
    for f in h_dma(A, 's29', 's24'): f()
    A('s_mov_b32 s31, 0')
    lp = A.lab('wq'); nosc = A.lab('nosc'); nold = A.lab('nold'); nd = A.lab('nd')
    A(f'{lp}:')
    A('s_waitcnt vmcnt(0)'); A('s_barrier')
    A('v_add_u32 v11, s28, v10')
    A(f's_xor_b32 s28, s28, {HB}'); A(f's_add_u32 s29, s29, {HB}')
    A('s_cmp_ge_u32 s31, 63'); A(f's_cbranch_scc1 {nd}')
    A('s_add_u32 s30, s24, s28')
    for f in h_dma(A, 's29', 's30'): f()
    A(f'{nd}:')
    A('s_cmp_ge_u32 s21, 2'); A(f's_cbranch_scc1 {nold}')
    flag_wait(A, 4, 's33', 's31', 's34', fail)
    for ks in range(6):
        if ks % 2 == 0: A(f's_add_u32 s30, s25, {ks*2048}')
        for t in range(2):
            A(f'buffer_load_dwordx4 {v(KXR+8*ks+4*t,4)}, v16, {WS}, s30 offen offset:{(ks%2)*2048 + 64*t} sc1')
    flag_wait(A, 4, 's32', 's31', 's35', fail)
    for ks in range(6):
        A(f'buffer_load_dwordx4 {v(KMR+4*ks,4)}, v17, {WS}, s26 offen offset:{ks*512} sc1')
    A(f'{nold}:')
    for k in range(2):
        A(f'ds_read_b128 {v(BOP+8*k,4)}, v11 offset:{k*2048}')
        A(f'ds_read_b128 {v(BOP+8*k+4,4)}, v11 offset:{k*2048+256}')
    for g in proj_mfmas(A, WB, ACC, BOP, 'v11', None):
        for x in g: A(x)
    for x in proj_pack(ACC, PK): A(x)
    A(f'ds_write_b128 v14, {v(PK,4)}'); A(f'ds_write_b128 v14, {v(PK+4,4)} offset:256'); A(f'ds_write_b128 v15, {v(PK+8,4)}')
    A('s_waitcnt lgkmcnt(0)'); A('s_barrier')
    A('s_cmp_ge_u32 s21, 2'); A(f's_cbranch_scc1 {nosc}')
    for ks in range(6): A(f'ds_read_b128 {v(BOP+4*ks,4)}, v18 offset:{ks*2048}')
    A('s_waitcnt vmcnt(0)')
    S = 88
    for ks in range(6):
        A(f's_waitcnt lgkmcnt({5-ks})')
        for t, src in enumerate((KXR+8*ks, KXR+8*ks+4, KMR+4*ks)):
            d = v(S+4*t, 4)
            A(f'v_mfma_f32_16x16x32_bf16 {d}, {v(src,4)}, {v(BOP+4*ks,4)}, {d if ks else 0}')
    for i in range(12): A(f'v_mul_f32 {v(S+i)}, s56, {v(S+i)}')
    for p in range(8): A(f'v_cndmask_b32 {v(S+p)}, v23, {v(S+p)}, s[{40+2*p}:{41+2*p}]')
    A(f'v_max3_f32 v24, {v(S)}, {v(S+1)}, {v(S+2)}')
    for i in range(3, 11, 2): A(f'v_max3_f32 v24, v24, {v(S+i)}, {v(S+i+1)}')
    A(f'v_max_f32 v24, v24, {v(S+11)}')
    xg_reduce(A, 'v_max_f32', 24, 25)
    for i in range(12): A(f'v_sub_f32 {v(S+i)}, {v(S+i)}, v24')
    for i in range(12): A(f'v_exp_f32 {v(S+i)}, {v(S+i)}')
    A(f'v_add_f32 v24, {v(S+8)}, {v(S+9)}'); A(f'v_add_f32 v25, {v(S+10)}, {v(S+11)}'); A('v_add_f32 v24, v24, v25')
    A(f'v_fma_f32 v24, v24, 0.5, {v(S)}')
    for i in range(1, 8): A(f'v_add_f32 v24, v24, {v(S+i)}')
    xg_reduce(A, 'v_add_f32', 24, 25)
    A('v_rcp_f32 v24, v24')
    for i in range(12): A(f'v_mul_f32 {v(S+i)}, {v(S+i)}, v24')
    for i in range(6): A(f'v_cvt_pk_bf16_f32 {v(100+i)}, {v(S+2*i)}, {v(S+2*i+1)}')
    A(f'buffer_store_dwordx4 v[100:103], v19, {WS}, s27 offen sc1')
    A(f'buffer_store_dwordx2 v[104:105], v20, {WS}, s27 offen sc1')
    A(f'{nosc}:')
    A(f's_add_u32 s25, s25, {32*12288}'); A(f's_add_u32 s26, s26, {32*3072}'); A(f's_add_u32 s27, s27, {32*2560}')
    A('s_add_u32 s31, s31, 1'); A('s_cmp_lt_u32 s31, 64'); A(f's_cbranch_scc1 {lp}')
    A('s_endpgm')

def ring_init(A):
    for k in range(4): A(f's_add_u32 s{36+k}, s19, {O_MB + k*SLOT}')
def ring_step(A):
    A('s_mov_b32 s30, s36'); A('s_mov_b32 s36, s37'); A('s_mov_b32 s37, s38'); A('s_mov_b32 s38, s39'); A('s_mov_b32 s39, s30')

def m_addr(A, va, vb, lds_m):
    lane_expr(A, va, [(0, 8, 16)])
    lane_expr(A, vb, [(0, 8, 8)])

def m_gather(A, va, vb, r, lds_m, fail):
    lp = A.lab('mg')
    A('s_add_u32 s57, s36, 4096'); A('s_add_u32 s58, s36, 16384')
    A('s_mov_b32 s100, 0')
    A(f'{lp}:')
    A(f'buffer_load_dwordx4 {v(r,4)}, {va}, {WS}, s36 offen sc1')
    A(f'buffer_load_dwordx4 {v(r+4,4)}, {va}, {WS}, s57 offen sc1')
    A(f'buffer_load_dwordx2 {v(r+8,2)}, {vb}, {WS}, s58 offen sc1')
    A('s_add_u32 s100, s100, 1'); A(f's_cmp_gt_u32 s100, {SPIN}'); A(f's_cbranch_scc1 {fail}')
    A('s_waitcnt vmcnt(2)')
    A(f'ds_write_b128 {va}, {v(r,4)} offset:{lds_m}')
    A(f'v_max3_u32 {v(r+10)}, {v(r)}, {v(r+1)}, {v(r+2)}')
    A('s_waitcnt vmcnt(1)')
    A(f'ds_write_b128 {va}, {v(r+4,4)} offset:{lds_m + 4096}')
    A(f'v_max3_u32 {v(r+10)}, {v(r+10)}, {v(r+3)}, {v(r+4)}')
    A(f'v_max3_u32 {v(r+11)}, {v(r+5)}, {v(r+6)}, {v(r+7)}')
    A('s_waitcnt vmcnt(0)')
    A(f'ds_write_b64 {vb}, {v(r+8,2)} offset:{lds_m + 8192}')
    A(f'v_max3_u32 {v(r+10)}, {v(r+10)}, {v(r+8)}, {v(r+9)}')
    A(f'v_max_u32 {v(r+10)}, {v(r+10)}, {v(r+11)}')
    A(f'v_cmp_eq_u32 vcc, -1, {v(r+10)}')
    A('s_waitcnt lgkmcnt(0)')
    A(f's_cbranch_vccnz {lp}')

class LG:
    def __init__(self, A): self.A = A; self.q = []
    def op(self, text, tag=None): self.A(text); self.q.append(tag)
    def wait(self, tag):
        if tag not in self.q: return
        n = len(self.q) - 1 - max(i for i, t in enumerate(self.q) if t == tag)
        self.A(f's_waitcnt lgkmcnt({min(n, 15)})')
        self.q = self.q[len(self.q) - min(n, 15):] if n else []
    def drain(self): self.A('s_waitcnt lgkmcnt(0)'); self.q = []

def role_c(A, fail):
    import functools, common
    lane_expr = functools.partial(common.lane_expr, tmp='v120')
    WB = 192; ACC = 16; MW = 32; VOR = (48, 64); YR = 80; PR = 84; D = 104; T = 108; IDX = 15
    LM = 0; LD = 10240
    lane_expr(A, 'v2', [(3, 1, 512), (4, 2, 128), (0, 3, 16)])
    A('s_lshl_b32 s24, s20, 14'); A('s_lshl_b32 s25, s21, 12'); A('s_add_u32 s24, s24, s25')
    A(f's_add_u32 s25, s24, {O_BM}')
    for ps in range(20):
        for t in range(4):
            A(f'buffer_load_dwordx4 {u(WB + (t*10 + ps//2)*8 + 4*(ps & 1), 4)}, v2, {WS}, s25 offen offset:{1024*t}')
        A('s_add_u32 s25, s25, 1310720')
        if ps >= 14: A('s_waitcnt vmcnt(56)')
    A(f's_add_u32 s24, s24, {O_VO}')
    lane_expr(A, 'v3', [(0, 8, 16)]); lane_expr(A, 'v4', [(0, 8, 8)])
    lane_expr(A, 'v5', [(0, 6, 16)], LM)
    A(f's_lshl_b32 s25, s21, 14'); A(f's_add_u32 s25, s25, {PBLK*16384}')
    A('s_add_u32 s26, s25, 128')
    lane_expr(A, 'v6', [(3, 1, 640), (4, 2, 128), (0, 3, 16)], 's26')
    lane_expr(A, 'v7', [(3, 1, 640), (4, 2, 1280), (0, 3, 16)], 's25')
    lane_expr(A, 'v8', [(2, 3, 16), (1, 1, 256), (0, 1, 8)], LD)
    A('s_lshl_b32 s25, s20, 7'); A('s_add_u32 s26, s25, 8192'); A('s_cmp_ge_u32 s20, 64'); A('s_cselect_b32 s25, s26, s25')
    lane_expr(A, 'v9', [(0, 5, 4)], 's25')
    A('v_cmp_gt_u32 vcc, 32, v0'); A('v_mov_b32 v10, 0x80000000'); A('v_cndmask_b32 v9, v10, v9, vcc')
    A('v_mov_b32 v10, -1')
    A('v_and_b32 v11, 8, v0'); A('v_cmp_eq_u32 vcc, 0, v11'); A('v_mov_b32 v11, 0xeeee'); A(f'v_mov_b32 {v(IDX)}, 0x4444'); A(f'v_cndmask_b32 {v(IDX)}, v11, {v(IDX)}, vcc')
    A('s_lshl_b32 s27, s20, 12'); A(f's_add_u32 s27, s27, {O_YZ}')
    A('s_lshl_b32 s28, s21, 7'); A(f's_add_u32 s28, s28, {O_MB + MB_FLAGS + F_O*128}')
    ring_init(A)
    def fo_wait(need):
        lp = A.lab('fo'); chk = A.lab('foc')
        A('s_mov_b32 s100, 0')
        A(f's_branch {chk}')
        A(f'{lp}:')
        A('s_load_dwordx8 s[40:47], s[4:5], s28 glc')
        A('s_add_u32 s100, s100, 1'); A(f's_cmp_gt_u32 s100, {SPIN}'); A(f's_cbranch_scc1 {fail}')
        A('s_waitcnt lgkmcnt(0)')
        A(f'{chk}:')
        for k in range(4): A(f's_min_u32 s{48+k}, s{40+2*k}, s{41+2*k}')
        A('s_min_u32 s48, s48, s49'); A('s_min_u32 s50, s50, s51'); A('s_min_u32 s48, s48, s50')
        A(f's_cmp_gt_u32 s48, {need}'); A(f's_cbranch_scc0 {lp}')
    def vo_load(r):
        for t in range(4): A(f'buffer_load_dwordx4 {v(r+4*t,4)}, v2, {WS}, s24 offen offset:{1024*t} sc1')
        A('s_add_u32 s24, s24, 1310720')
    A('s_load_dwordx8 s[40:47], s[4:5], s28 glc'); A('s_waitcnt lgkmcnt(0)')
    fo_wait(0); vo_load(VOR[0])
    A('s_mov_b32 s31, 0')
    lp = A.lab('c'); done = A.lab('cdone')
    A(f'{lp}:')
    for par in range(2):
        cur, nxt = VOR[par], VOR[1-par]
        A('s_load_dwordx8 s[40:47], s[4:5], s28 glc')
        for i in range(16): A(f'v_mov_b32 {v(ACC+i)}, 0')
        m_gather(A, 'v3', 'v4', PR, LM, fail)
        A('s_barrier')
        nv = A.lab('nv')
        A('s_cmp_ge_u32 s31, 62'); A(f's_cbranch_scc1 {nv}')
        A('s_add_u32 s29, s31, 1')
        fo_wait('s29'); vo_load(nxt)
        A(f'{nv}:')
        A(f'buffer_store_dword v10, v9, {WS}, s39 offen sc1')
        lg = LG(A)
        for k in range(3): lg.op(f'ds_read_b128 {v(MW+4*k,4)}, v5 offset:{1024*k}', k)
        for ks in range(10):
            if ks + 3 < 10: lg.op(f'ds_read_b128 {v(MW+4*((ks+3)%4),4)}, v5 offset:{1024*(ks+3)}', ks+3)
            lg.wait(ks)
            for t in range(4):
                A(f'v_smfmac_f32_16x16x64_bf16 {v(ACC+4*t,4)}, {v(MW+4*(ks%4),4)}, {u(WB+(t*10+ks)*8,8)}, {v(IDX)}')
        for pa, (ta, tb) in enumerate(((0, 2), (1, 3))):
            for r in range(4): A(f'v_permlane32_swap_b32 {v(ACC+4*ta+r)}, {v(ACC+4*tb+r)}')
            for r in range(4): A(f'v_add_f32 {v(ACC+4*ta+r)}, {v(ACC+4*ta+r)}, {v(ACC+4*tb+r)}')
            for z in range(2): A(f'v_cvt_pk_bf16_f32 {v(YR+2*pa+z)}, {v(ACC+4*ta+2*z)}, {v(ACC+4*ta+2*z+1)}')
        A(f'v_permlane16_swap_b32 {v(YR)}, {v(YR+2)}'); A(f'v_permlane16_swap_b32 {v(YR+1)}, {v(YR+3)}')
        if par == 1:
            A('s_cmp_eq_u32 s31, 63'); A(f's_cbranch_scc1 {done}')
        pl = A.lab('pg')
        A('s_mov_b32 s100, 0')
        A(f'{pl}:')
        A(f'buffer_load_dwordx4 {v(PR,4)}, v7, {WS}, s36 offen sc1')
        for t in range(4): A(f'buffer_load_dwordx4 {v(PR+4+4*t,4)}, v6, {WS}, s36 offen offset:{1280*t} sc1')
        A('s_add_u32 s100, s100, 1'); A(f's_cmp_gt_u32 s100, {SPIN}'); A(f's_cbranch_scc1 {fail}')
        for t in range(5):
            A(f's_waitcnt vmcnt({4-t})')
            z = v(YR, 4) if t == 0 else v(cur + 4*(t-1), 4)
            A(f'v_mfma_f32_16x16x32_bf16 {v(D,4)}, {z}, {v(PR+4*t,4)}, {v(D,4) if t else 0}')
            b = PR + 4*t
            if t == 0: A(f'v_max3_u32 {v(T)}, {v(b)}, {v(b+1)}, {v(b+2)}'); A(f'v_max_u32 {v(T)}, {v(T)}, {v(b+3)}')
            else: A(f'v_max3_u32 {v(T)}, {v(T)}, {v(b)}, {v(b+1)}'); A(f'v_max3_u32 {v(T)}, {v(T)}, {v(b+2)}, {v(b+3)}')
        A(f'v_cmp_eq_u32 vcc, -1, {v(T)}')
        A(f's_cbranch_vccnz {pl}')
        A(f'ds_write_b128 v3, {v(D,4)} offset:{LD}')
        A('s_waitcnt lgkmcnt(0)'); A('s_barrier')
        nw = A.lab('nw')
        A('s_cmp_lg_u32 s21, 0'); A(f's_cbranch_scc1 {nw}')
        for k in range(8): A(f'ds_read_b64 {v(PR+2*k,2)}, v8 offset:{(k>>1)*1024 + (k&1)*640}')
        for k in range(4):
            A(f's_waitcnt lgkmcnt({6-2*k})')
            A(f'v_pk_add_f32 {v(PR+4*k,2)}, {v(PR+4*k,2)}, {v(PR+4*k+2,2)}')
            if k == 1: A(f'v_pk_add_f32 {v(PR,2)}, {v(PR,2)}, {v(PR+4,2)}')
            if k == 2: A(f'v_pk_add_f32 {v(PR,2)}, {v(PR,2)}, {v(PR+8,2)}')
        A(f'v_pk_add_f32 {v(PR,2)}, {v(PR,2)}, {v(PR+12,2)}')
        A(f'v_cvt_pk_bf16_f32 {v(T)}, {v(PR)}, {v(PR+1)}')
        A(f'v_min_u32 {v(T)}, -2, {v(T)}')
        A(f'buffer_store_dword {v(T)}, v9, {WS}, s37 offen sc1')
        A(f'{nw}:')
        A(f'buffer_store_dwordx4 {v(YR,4)}, v3, {WS}, s27 offen sc1')
        A(f's_add_u32 s27, s27, {80*4096}')
        ring_step(A)
        A('s_add_u32 s31, s31, 1')
    A(f's_branch {lp}')
    A(f'{done}:')
    A(f'buffer_store_dwordx4 {v(YR,4)}, v3, {WS}, s27 offen sc1')
    A('s_endpgm')

def role_s(A, fail):
    WB = 112; AQ = 16; AK = 28; ST = 40; MW = 64; XQ = 80; MI = 104; IDX = 15
    LM = 0; LTQ = 10240; LTK = 13312; LKX = 16384; LW = 81920
    def inlds(mat, t, ks): return t == 2 and (ks & 1)
    wreg = {}; n = 0
    for mat in range(2):
        for t in range(3):
            for ks in range(10):
                if not inlds(mat, t, ks): wreg[mat, t, ks] = WB + 8*n; n += 1
    assert n == 50
    head_dma_setup(A, 's21')
    A('s_mul_i32 s87, s20, 384'); A(f's_mul_i32 s86, s21, {16*12288}'); A('s_add_u32 s87, s87, s86')
    A('s_mul_i32 s86, s21, 96')
    lane_expr(A, 'v5', [(5, 1, 16*384), (4, 1, 4*384), (2, 1, 384), (3, 1, 8*384), (0, 2, 8)], 's86')
    A('s_mul_i32 s86, s21, 20480'); A(f's_add_u32 s86, s86, {LW}')
    lane_expr(A, 'v6', [(0, 6, 16)], 's86')
    dq = head_dma(A, 's[8:11]', 's87', 's21'); dk = head_dma(A, 's[12:15]', 's87', 's21')
    def dma(b, off): (dq if b < 10 else dk)(b % 10, off)
    def consume(b, off):
        mat, ks = b // 10, b % 10
        A(f'v_add_u32 v7, {off}, v5')
        for t in range(3):
            r = ST if inlds(mat, t, ks) else wreg[mat, t, ks]
            for hi in range(2):
                for jp in range(2):
                    A(f'ds_read_b64_tr_b16 {u(r + 4*hi + 2*jp, 2)}, v7 offset:{(32*hi + 2*jp)*384 + 32*t}')
        if ks & 1:
            i = mat*5 + ks//2
            A('s_waitcnt lgkmcnt(0)')
            A(f'ds_write_b128 v6, {v(ST,4)} offset:{2048*i}'); A(f'ds_write_b128 v6, {v(ST+4,4)} offset:{2048*i + 1024}')
    staged_load(A, 20, 3, 24576, dma, consume, 6)
    TM = 'v111'
    lane_expr(A, 'v3', [(0, 8, 16)], tmp=TM); lane_expr(A, 'v4', [(0, 8, 8)], tmp=TM)
    lane_expr(A, 'v5', [(0, 6, 16)], tmp=TM)
    lane_expr(A, 'v7', [(6, 2, 768), (0, 4, 16), (4, 1, 8), (5, 1, 4)], tmp=TM)
    A('v_and_b32 v11, 8, v0'); A('v_cmp_eq_u32 vcc, 0, v11'); A('v_mov_b32 v11, 0xeeee'); A(f'v_mov_b32 {v(IDX)}, 0x4444'); A(f'v_cndmask_b32 {v(IDX)}, v11, {v(IDX)}, vcc')
    ring_init(A)
    A('s_mov_b32 s31, 0')
    A('s_mul_i32 s25, s20, 12288'); A(f's_add_u32 s25, s25, {O_KX}')
    A('s_mul_i32 s26, s20, 3072'); A(f's_add_u32 s26, s26, {O_KM}')
    A('s_lshl_b32 s32, s20, 7'); A(f's_add_u32 s33, s32, {O_MB + MB_FLAGS + F_K*128}'); A(f's_add_u32 s32, s32, {O_MB + MB_FLAGS + F_M*128}')
    A('s_mov_b32 s34, 0'); A(f's_mov_b32 s28, {LKX}')
    def kx_dma():
        for i in range(12):
            if i % 4 == 0:
                A(f's_add_u32 m0, s28, {4096*(i//4)}'); A(f's_add_u32 s89, s25, {4096*(i//4)}')
            A(f'buffer_load_dwordx4 v5, {WS}, s89 offen offset:{1024*(i%4)} sc1 lds')
        A(f's_add_u32 s25, s25, {32*12288}')
    labs = [A.lab('sw') for _ in range(4)]
    for w in range(3):
        A(f's_cmp_eq_u32 s21, {w}'); A(f's_cbranch_scc1 {labs[w]}')
    A(f's_branch {labs[3]}')

    def epilogue(acc, lt, lg, tag):
        o = []
        for t in range(3):
            b = acc + 4*t
            o.append(f'v_permlane32_swap_b32 {v(b)}, {v(b+2)}')
            o.append(f'v_permlane32_swap_b32 {v(b+1)}, {v(b+3)}')
        for t in range(3):
            b = acc + 4*t
            o.append(f'v_add_f32 {v(b)}, {v(b)}, {v(b+2)}')
            o.append(f'v_add_f32 {v(b+1)}, {v(b+1)}, {v(b+3)}')
            o.append(f'v_cvt_pk_bf16_f32 {v(b)}, {v(b)}, {v(b+1)}')
            o.append(lambda b=b, t=t: lg.op(f'ds_write_b32 v7, {v(b)} offset:{lt + 256*t}', tag))
        return o

    for w in range(4):
        A(f'{labs[w]}:')
        if w == 0:
            lane_expr(A, 'v8', [(4, 2, 128), (2, 2, 16), (0, 1, 8)], tmp=TM)
            lane_expr(A, 'v9', [(4, 2, 512), (2, 2, 128), (0, 2, 16)], tmp=TM)
            A('s_lshr_b32 s24, s20, 3'); A('s_lshl_b32 s24, s24, 14'); A('s_and_b32 s27, s20, 7'); A('s_mul_i32 s27, s27, 640')
            A('s_add_u32 s24, s24, s27'); A(f's_add_u32 s24, s24, {PBLK*16384}'); A('s_add_u32 s27, s24, 128')
            A('v_mov_b32 v14, 0x80000000')
            lane_expr(A, 'v10', [(4, 2, 128), (0, 3, 16)], 's27', tmp=TM)
            A('v_and_b32 v11, 8, v0'); A('v_cmp_eq_u32 vcc, 0, v11'); A('v_cndmask_b32 v10, v14, v10, vcc')
            lane_expr(A, 'v12', [(4, 1, 8), (0, 3, 16)], 's24', tmp=TM)
            A('v_and_b32 v11, 40, v0'); A('v_cmp_eq_u32 vcc, 0, v11'); A('v_cndmask_b32 v12, v14, v12, vcc')
            lane_expr(A, 'v13', [(0, 6, 16)], 's24', tmp=TM)
            A('v_cmp_gt_u32 vcc, 40, v0'); A('v_cndmask_b32 v13, v14, v13, vcc')
            A(f's_mov_b32 s56, {f2h(CSC)}')
        if w == 1:
            lane_expr(A, 'v8', [(4, 2, 256), (1, 1, 128), (2, 2, 16), (0, 1, 8)], tmp=TM)
            A('v_mov_b32 v9, 0x80000000'); A('v_mov_b32 v10, s32'); A('v_cmp_eq_u32 vcc, 64, v0'); A('v_cndmask_b32 v9, v9, v10, vcc')
        if w == 2:
            flag_wait(A, 4, 's33', 0, 's34', fail)
            kx_dma()
        lp = A.lab('s'); done = A.lab('sdone')
        A(f'{lp}:')
        lg = LG(A)
        def stage(i):
            for z in range(2): lg.op(f'ds_read_b128 {v(ST + 8*(i%3) + 4*z, 4)}, v6 offset:{2048*i + 1024*z}', ('w', i))
        for i in range(3): stage(i)
        for i in range(24): A(f'v_mov_b32 {v(AQ+i)}, 0')
        m_gather(A, 'v3', 'v4', MW, LM, fail); lg.q = []
        A('s_barrier')
        def mread(g): lg.op(f'ds_read_b128 {v(MW+4*(g%4),4)}, v5 offset:{LM + 1024*(g%10)}', ('m', g))
        for g in range(3): mread(g)
        qepi = epilogue(AQ, LTQ, lg, 'tq')
        def kxread(i):
            lg.op(f'ds_read_b128 {v(ST + 4*(i%6), 4)}, v11 offset:{(i//2)*2048 + (i&1)*64}', ('kx', i))
        if w == 0: A('v_add_u32 v11, s28, v9')
        for g in range(20):
            mat, ks = g // 10, g % 10
            if g + 3 < 20: mread(g + 3)
            lg.wait(('m', g))
            i = mat*5 + ks//2
            if ks & 1: lg.wait(('w', i))
            mf = []
            for t in range(3):
                r = v(ST + 8*(i%3), 8) if inlds(mat, t, ks) else u(wreg[mat, t, ks], 8)
                mf.append(f'v_smfmac_f32_16x16x64_bf16 {v((AQ, AK)[mat]+4*t,4)}, {v(MW+4*(g%4),4)}, {r}, {v(IDX)}')
            fill = []
            if 12 <= g <= 14: fill = qepi[(g-12)*6:(g-11)*6]
            interleave(A, mf, fill, per=2)
            if (ks & 1) and i + 3 < 10: stage(i + 3)
            if g == 15:
                lg.wait('tq'); A('s_barrier')
            if w == 0 and 16 <= g <= 18:
                for t in range(2*(g-16), 2*(g-15)):
                    for z in range(2): lg.op(f'ds_read_b64_tr_b16 {v(XQ+4*t+2*z,2)}, v8 offset:{LTQ + 512*t + 64*z}', ('xq', t))
            if w == 0 and g == 17:
                for i2 in (2, 3): kxread(i2)
            if w == 0 and g == 18:
                for i2 in (4, 5): kxread(i2)
        kepi = epilogue(AK, LTK, lg, 'tk')
        S = AQ
        if w != 0:
            for x in kepi:
                x() if callable(x) else A(x)
            lg.drain(); A('s_barrier')
        else:
            for i2 in (0, 1): kxread(i2)
            order = [2, 3, 4, 5, 0, 1, 8, 9, 10, 11, 6, 7]
            started = set()
            def smx(i):
                def f():
                    lg.wait(('kx', i)); lg.wait(('xq', i//2))
                    d = v(S + 4*(i & 1), 4)
                    A(f'v_mfma_f32_16x16x32_bf16 {d}, {v(ST+4*(i%6),4)}, {v(XQ+4*(i//2),4)}, {d if (i & 1) in started else 0}')
                    started.add(i & 1)
                    if i < 6: kxread(i + 6)
                return f
            interleave(A, [smx(i) for i in order[:6]], kepi, start=1, per=4)
            lg.wait('tk'); A('s_barrier')
            XK = [MW, MW+4, MW+8, MW+12, AK, AK+4]
            for t in range(6):
                for z in range(2): lg.op(f'ds_read_b64_tr_b16 {v(XK[t]+2*z,2)}, v8 offset:{LTK + 512*t + 64*z}', ('xk', t))
                smx(order[6+t])()
            for t in range(6):
                lg.wait(('xk', t))
                A(f'v_mfma_f32_16x16x32_bf16 {v(S+8,4)}, {v(XK[t],4)}, {v(XQ+4*t,4)}, {v(S+8,4) if t else 0}')
            A('s_cmp_eq_u32 s31, 63'); A(f's_cbranch_scc1 {done}')
            M = MI
            A(f'v_max3_f32 {v(M)}, {v(S)}, {v(S+1)}, {v(S+2)}'); A(f'v_max3_f32 {v(M+1)}, {v(S+3)}, {v(S+4)}, {v(S+5)}')
            A(f'v_max3_f32 {v(M)}, {v(M)}, {v(S+6)}, {v(S+7)}')
            A(f'v_max3_f32 {v(M+1)}, {v(M+1)}, {v(S+8)}, {v(S+9)}'); A(f'v_max3_f32 {v(M)}, {v(M)}, {v(S+10)}, {v(S+11)}')
            A(f'v_max_f32 {v(M)}, {v(M)}, {v(M+1)}')
            xg_reduce(A, 'v_max_f32', M, M+1)
            A(f'v_mul_f32 {v(M)}, s56, {v(M)}')
            for i in range(12): A(f'v_fma_f32 {v(S+i)}, {v(S+i)}, s56, -{v(M)}')
            for i in range(12): A(f'v_exp_f32 {v(S+(i+8)%12)}, {v(S+(i+8)%12)}')
            A(f'v_pk_add_f32 {v(M,2)}, {v(S+8,2)}, {v(S+10,2)}')
            A(f'v_pk_fma_f32 {v(M,2)}, {v(M,2)}, 0.5, {v(S,2)} op_sel_hi:[1,0,1]')
            A(f'v_pk_add_f32 {v(M+2,2)}, {v(S+2,2)}, {v(S+4,2)}')
            A(f'v_pk_add_f32 {v(M,2)}, {v(M,2)}, {v(S+6,2)}')
            A(f'v_pk_add_f32 {v(M,2)}, {v(M,2)}, {v(M+2,2)}')
            A(f'v_add_f32 {v(M)}, {v(M)}, {v(M+1)}')
            xg_reduce(A, 'v_add_f32', M, M+1)
            A(f'v_rcp_f32 {v(M)}, {v(M)}')
            for i in range(6):
                A(f'v_pk_mul_f32 {v(S+2*i,2)}, {v(S+2*i,2)}, {v(M,2)} op_sel_hi:[1,0] clamp')
                A(f'v_cvt_pk_bf16_f32 {v(ST+i)}, {v(S+2*i)}, {v(S+2*i+1)}')
                if i == 3: A(f'buffer_store_dwordx4 {v(ST,4)}, v10, {WS}, s36 offen sc1')
            A(f'buffer_store_dwordx2 {v(ST+4,2)}, v12, {WS}, s36 offen sc1')
            for i in range(4): A(f'v_mov_b32 {v(M+i)}, -1')
            A(f'buffer_store_dwordx4 {v(M,4)}, v13, {WS}, s38 offen sc1')
        if w == 1:
            for t in range(3):
                for z in range(2): A(f'ds_read_b64_tr_b16 {v(XQ+4*t+2*z,2)}, v8 offset:{LTK + 1024*t + 64*z}')
            A('s_add_u32 s29, s31, 1'); A('v_mov_b32 v10, s29')
            A('s_waitcnt lgkmcnt(0)')
            for t in range(3): A(f'buffer_store_dwordx4 {v(XQ+4*t,4)}, v5, {WS}, s26 offen offset:{1024*t} sc1')
            A(f's_add_u32 s26, s26, {32*3072}')
            A('s_waitcnt vmcnt(0)')
            A(f'buffer_store_dword v10, v9, {WS}, 0 offen sc1')
        A(f's_xor_b32 s28, s28, {LKX ^ (LKX + 12288)}')
        if w == 2:
            nk = A.lab('nk')
            A('s_cmp_ge_u32 s31, 62'); A(f's_cbranch_scc1 {nk}')
            A('s_add_u32 s29, s31, 1')
            flag_wait(A, 4, 's33', 's29', 's34', fail)
            kx_dma()
            A(f'{nk}:')
        ring_step(A)
        A('s_add_u32 s31, s31, 1'); A('s_cmp_lt_u32 s31, 64'); A(f's_cbranch_scc1 {lp}')
        A(f'{done}:')
        A('s_endpgm')
```

```python
from common import *

D0 = 16
F0 = 64

def xlane_sum8(A, r, t):
    A(f'v_add_f32_dpp {v(r)}, {v(r)}, {v(r)} row_ror:8 row_mask:0xf bank_mask:0xf')
    A(f'v_mov_b32 {v(t)}, {v(r)}')
    A(f'v_permlane16_swap_b32 {v(t)}, {v(r)}')
    A(f'v_add_f32 {v(r)}, {v(r)}, {v(t)}')
    A(f'v_mov_b32 {v(t)}, {v(r)}')
    A(f'v_permlane32_swap_b32 {v(t)}, {v(r)}')
    A(f'v_add_f32 {v(r)}, {v(r)}, {v(t)}')

def ln_regs(A, twice, out0):
    n = 40
    A('s_mov_b32 s99, 0xffff0000')
    for i in range(n):
        if i % 4 == 0: A(f's_waitcnt vmcnt({9 - i//4})')
        A(f'v_lshlrev_b32 {v(F0+2*i)}, 16, {v(D0+i)}')
        A(f'v_and_b32 {v(F0+2*i+1)}, s99, {v(D0+i)}')
    A(f'v_pk_add_f32 v[4:5], {v(F0,2)}, {v(F0+2,2)}')
    A(f'v_pk_add_f32 v[6:7], {v(F0+4,2)}, {v(F0+6,2)}')
    for i in range(4, n):
        acc = 4 + 2*(i & 1)
        A(f'v_pk_add_f32 {v(acc,2)}, {v(acc,2)}, {v(F0+2*i,2)}')
    A('v_pk_add_f32 v[4:5], v[4:5], v[6:7]')
    A('v_add_f32 v4, v4, v5')
    xlane_sum8(A, 4, 8)
    A('v_mul_f32 v4, 0xbacccccd, v4')
    A('v_mov_b32 v5, v4')
    for i in range(n):
        A(f'v_pk_add_f32 {v(F0+2*i,2)}, {v(F0+2*i,2)}, v[4:5]')
    A(f'v_pk_mul_f32 v[6:7], {v(F0,2)}, {v(F0,2)}')
    A(f'v_pk_mul_f32 v[10:11], {v(F0+2,2)}, {v(F0+2,2)}')
    for i in range(2, n):
        acc = 6 if (i & 1) == 0 else 10
        A(f'v_pk_fma_f32 {v(acc,2)}, {v(F0+2*i,2)}, {v(F0+2*i,2)}, {v(acc,2)}')
    A('v_pk_add_f32 v[6:7], v[6:7], v[10:11]')
    A('v_add_f32 v6, v6, v7')
    xlane_sum8(A, 6, 8)
    A('v_mul_f32 v6, 0x3acccccd, v6')
    A('v_add_f32 v7, 0x3727c5ac, v6')
    A('v_rsq_f32 v4, v7')
    if twice:
        A('v_mul_f32 v6, v6, v4')
        A('v_mul_f32 v6, v6, v4')
        A('v_add_f32 v6, 0x3727c5ac, v6')
        A('v_rsq_f32 v6, v6')
        A('v_mul_f32 v4, v4, v6')
    A('v_mov_b32 v5, v4')
    for i in range(n):
        A(f'v_pk_mul_f32 {v(F0+2*i,2)}, {v(F0+2*i,2)}, v[4:5]')
        A(f'v_cvt_pk_bf16_f32 {v(out0+i)}, {v(F0+2*i)}, {v(F0+2*i+1)}')

def tr_store(A, src0, nch, ldsbase, store):
    stride = nch*128 + 16
    lane_expr(A, 'v12', [(0, 3, stride), (3, 3, 16)], ldsbase)
    lane_expr(A, 'v13', [(2, 2, stride), (4, 2, 32), (0, 2, 8)], ldsbase)
    for i in range(nch):
        A(f'ds_write_b128 v12, {v(src0+4*i,4)} offset:{128*i}')
    A('s_waitcnt lgkmcnt(0)')
    for i in range(nch):
        A(f'ds_read_b64_tr_b16 {v(F0+4*i,2)}, v13 offset:{128*i}')
        A(f'ds_read_b64_tr_b16 {v(F0+4*i+2,2)}, v13 offset:{128*i + 4*stride}')
        if i >= 3:
            A('s_waitcnt lgkmcnt(6)'); store(i-3, F0+4*(i-3))
    for k in range(3):
        A(f's_waitcnt lgkmcnt({4-2*k})'); store(nch-3+k, F0+4*(nch-3+k))

def xc_lane(A, dst):
    lane_expr(A, dst, [(3, 3, 512), (0, 3, 16)])

def ln_task(A, mode, stask, ldsbase='0'):
    A(f's_lshr_b32 s90, {stask}, 2')
    A('s_mul_i32 s90, s90, 40960')
    A(f's_and_b32 s91, {stask}, 3')
    A('s_lshl_b32 s91, s91, 7')
    A('s_add_u32 s90, s90, s91')
    xc_lane(A, 'v2')
    if mode == 'x':
        lane_expr(A, 'v3', [(0, 3, 1280), (3, 3, 16)])
        A(f's_mul_i32 s92, {stask}, 10240')
        for i in range(10):
            A(f'buffer_load_dwordx4 {v(D0+4*i,4)}, v3, s[8:11], s92 offen offset:{128*i}')
    else:
        A(f's_add_u32 s92, s90, {O_X2 if mode == "h" else O_X1}')
        for i in range(10):
            A(f'buffer_load_dwordx4 {v(D0+4*i,4)}, v2, {WS}, s92 offen')
            if i < 9: A('s_add_u32 s92, s92, 4096')
    O0 = 144
    ln_regs(A, mode == 't', O0)
    if mode in ('x', 'h'):
        A(f's_add_u32 s92, s90, {O_H}')
        A(f's_add_u32 s93, s90, {O_X2}')
        for i in range(10):
            A(f'buffer_store_dwordx4 {v(O0+4*i,4)}, v2, {WS}, s92 offen')
            if mode == 'x': A(f'buffer_store_dwordx4 {v(D0+4*i,4)}, v2, {WS}, s93 offen')
            A('s_add_u32 s92, s92, 4096')
            A('s_add_u32 s93, s93, 4096')
    else:
        lane_expr(A, 'v3', [(0, 6, 16)])
        A(f's_mul_i32 s92, {stask}, 10240')
        A(f's_add_u32 s92, s92, {O_H2T}')
        def st(i, r):
            A(f'buffer_store_dwordx4 {v(r,4)}, v3, {WS}, s92 offen offset:{1024*(i%4)}')
            if i % 4 == 3: A('s_add_u32 s92, s92, 4096')
        tr_store(A, O0, 10, ldsbase, st)

def wt_task(A, stask, srdsrc, ncols, dst, ldsbase):
    parts = ncols // 512
    if parts == 4:
        A(f's_lshr_b32 s90, {stask}, 2'); A(f's_and_b32 s91, {stask}, 3')
    else:
        A(f's_mul_hi_u32 s90, {stask}, 0x55555556'); A('s_mul_i32 s91, s90, 3'); A(f's_sub_u32 s91, {stask}, s91')
    A(f's_mul_i32 s90, s90, {ncols*16}')
    A('s_lshl_b32 s92, s91, 10'); A('s_add_u32 s92, s92, s90')
    A('s_lshl_b32 s93, s91, 13'); A('s_add_u32 s93, s93, s90'); A(f's_add_u32 s93, s93, {dst}')
    lane_expr(A, 'v3', [(0, 3, ncols*2), (3, 3, 16)])
    for i in range(8):
        A(f'buffer_load_dwordx4 {v(D0+4*i,4)}, v3, {srdsrc}, s92 offen offset:{128*i}')
    lane_expr(A, 'v3', [(0, 6, 16)])
    A('s_waitcnt vmcnt(0)')
    def st(i, r):
        A(f'buffer_store_dwordx4 {v(r,4)}, v3, {WS}, s93 offen offset:{1024*(i%4)}')
        if i % 4 == 3: A('s_add_u32 s93, s93, 4096')
    tr_store(A, D0, 8, ldsbase, st)
```

```python
from common import *

def staged_load(A, nblk, nbuf, blkbytes, dma, consume, ndma):
    depth = nbuf - 1
    for b in range(min(depth, nblk)): dma(b, (b % nbuf)*blkbytes)
    for b in range(nblk):
        inflight = min(nblk, b + depth) - b - 1
        A(f's_waitcnt vmcnt({inflight*ndma})')
        A('s_barrier')
        if b + depth < nblk: dma(b + depth, ((b + depth) % nbuf)*blkbytes)
        consume(b, (b % nbuf)*blkbytes)
        A('s_waitcnt lgkmcnt(0)')
    A('s_barrier')

def head_dma_setup(A, swave):
    for i in range(3):
        A(f'v_and_b32 v254, 63, v0')
        A(f'v_add_u32 v254, {64*i}, v254')
        A(f'v_mul_u32_u24 v253, 2731, v254')
        A(f'v_lshrrev_b32 v253, 16, v253')
        A(f'v_mul_u32_u24 v252, 24, v253')
        A(f'v_sub_u32 v254, v254, v252')
        A(f'v_mul_u32_u24 v253, 12288, v253')
        A(f'v_lshl_add_u32 {v(2+i)}, v254, 4, v253')
    A(f's_mul_i32 s88, {swave}, 6144')

def head_dma(A, srdw, sbase, swave):
    def dma(blk, off):
        for half in range(2):
            A(f's_add_u32 s89, {sbase}, {(64*blk + 8*half)*12288}')
            for i in range(3):
                A(f's_add_u32 m0, s88, {off + half*3072 + i*1024}')
                A(f'buffer_load_dwordx4 {v(2+i)}, {srdw}, s89 offen lds')
    return dma

def load_proj_weights(A, srdw, shead, swave, wbase):
    head_dma_setup(A, swave)
    A(f's_mul_i32 s87, {shead}, 384')
    A(f's_mul_i32 s86, {swave}, {16*12288}')
    A('s_add_u32 s87, s87, s86')
    A(f's_mul_i32 s86, {swave}, 96')
    lane_expr(A, 'v5', [(4, 2, 8*384), (2, 2, 384), (0, 2, 16)], 's86')
    lane_expr(A, 'v6', [(4, 2, 8*384), (2, 2, 384), (0, 2, 8)], 's86')
    def consume(blk, off):
        A(f'v_add_u32 v7, {off}, v5'); A(f'v_add_u32 v8, {off}, v6')
        for k2 in range(2):
            ks = 2*blk + k2
            for t in range(3):
                for z in range(2):
                    o = (32*k2 + 4*z)*384 + (0, 8, 64)[t]
                    A(f'ds_read_b64_tr_b16 {u(wbase + (t*20+ks)*4 + 2*z, 2)}, {"v8" if t == 2 else "v7"} offset:{o}')
    staged_load(A, 10, 6, 24576, head_dma(A, srdw, 's87', swave), consume, 6)

HB = 40960

def h_dma(A, sseg_off, ldsoff_s):
    out = []
    for i in range(10):
        def f(i=i):
            if i % 4 == 0:
                A(f's_add_u32 m0, {ldsoff_s}, {4096*(i//4)}')
                A(f's_add_u32 s89, {sseg_off}, {4096*(i//4)}')
            A(f'buffer_load_dwordx4 v9, {WS}, s89 offen offset:{1024*(i%4)} lds')
        out.append(f)
    return out

def proj_mfmas(A, wbase, acc, bop, vaddr, nxt_addr):
    groups = []
    for ks in range(20):
        g = []
        k2 = ks + 2
        ad, kk = (vaddr, k2) if k2 < 20 else (nxt_addr, k2 - 20)
        sl = bop + 8*(k2 % 4)
        cur = bop + 8*(ks % 4)
        if ad is not None:
            g.append(f'ds_read_b128 {v(sl,4)}, {ad} offset:{kk*2048}')
            g.append(f'ds_read_b128 {v(sl+4,4)}, {ad} offset:{kk*2048 + 256}')
            g.append('s_waitcnt lgkmcnt(4)')
        else:
            g.append(f's_waitcnt lgkmcnt({2 if ks == 18 else 0})')
        for T in range(2):
            for t in range(3):
                d = v(acc + (T*3+t)*4, 4)
                g.append(f'v_mfma_f32_16x16x32_bf16 {d}, {u(wbase + (t*20+ks)*4, 4)}, {v(cur+4*T,4)}, {d if ks else 0}')
        groups.append(g)
    return groups

def proj_pack(acc, pk):
    o = []
    for T in range(2):
        for t in range(2):
            b = acc + (T*3+t)*4
            o.append(f'v_cvt_pk_bf16_f32 {v(pk+4*T+2*t)}, {v(b)}, {v(b+1)}')
            o.append(f'v_cvt_pk_bf16_f32 {v(pk+4*T+2*t+1)}, {v(b+2)}, {v(b+3)}')
    for T in range(2):
        b = acc + (T*3+2)*4
        o.append(f'v_cvt_pk_bf16_f32 {v(pk+8+2*T)}, {v(b)}, {v(b+1)}')
        o.append(f'v_cvt_pk_bf16_f32 {v(pk+8+2*T+1)}, {v(b+2)}, {v(b+3)}')
    o.append('s_nop 0')
    o.append(f'v_permlane16_swap_b32 {v(pk+8)}, {v(pk+10)}')
    o.append(f'v_permlane16_swap_b32 {v(pk+9)}, {v(pk+11)}')
    return o

def proj_out_addr(A, dA, dB, swave):
    A(f's_mul_i32 s86, {swave}, {6*512}')
    lane_expr(A, dA, [(4, 2, 512), (0, 4, 16)], 's86')
    A(f's_add_u32 s86, s86, {4*512}')
    lane_expr(A, dB, [(5, 1, 512), (4, 1, 256), (0, 4, 16)], 's86')

def role_proj(A, fail):
    WB = 256
    load_proj_weights(A, 's[8:11]', 's20', 's21', WB)
    ACC = (64, 88); BOP = 112; PK = 144
    A('s_mul_i32 s24, s21, 10240')
    lane_expr(A, 'v9', [(0, 6, 16)], 's24')
    lane_expr(A, 'v10', [(4, 2, 512), (0, 4, 16)])
    proj_out_addr(A, 'v14', 'v15', 's21')
    A('s_mul_i32 s25, s20, 12288'); A('s_add_u32 s25, s25, s22')
    lane0_off(A, 'v16', 's23')
    A('s_mov_b32 s26, 0'); A(f's_mov_b32 s27, {HB}'); A(f's_mov_b32 s28, {2*HB}')
    A(f's_mov_b32 s29, {O_H}')
    for k in range(2):
        A(f's_add_u32 s30, s24, {k*HB}')
        for f in h_dma(A, 's29', 's30'): f()
        A(f's_add_u32 s29, s29, {HB}')
    A('s_waitcnt vmcnt(10)'); A('s_barrier')
    for k in range(2):
        A(f'ds_read_b128 {v(BOP+8*k,4)}, v10 offset:{k*2048}')
        A(f'ds_read_b128 {v(BOP+8*k+4,4)}, v10 offset:{k*2048+256}')
    A('v_mov_b32 v11, v10')
    A('s_mov_b32 s31, 0')
    lp = A.lab('proj')
    A(f'{lp}:')
    for par in range(2):
        acc, prev = ACC[par], ACC[1-par]
        A('v_add_u32 v12, s27, v10')
        groups = proj_mfmas(A, WB, acc, BOP, 'v11', 'v12')
        skip = A.lab('pskip')
        pack = proj_pack(prev, PK)
        for ks, g in enumerate(groups):
            fill = []
            if 2 <= ks <= 6:
                fill = pack[(ks-2)*3:(ks-1)*3]
            pre, mf = g[:-6], g[-6:]
            for x in pre: A(x)
            interleave(A, mf, fill, start=1)
            if ks == 7:
                if par == 0:
                    A('s_cmp_eq_u32 s31, 0'); A(f's_cbranch_scc1 {skip}')
                A(f'buffer_store_dwordx4 {v(PK,4)}, v14, {WS}, s25 offen sc1')
                A(f'buffer_store_dwordx4 {v(PK+4,4)}, v14, {WS}, s25 offen offset:256 sc1')
                A(f'buffer_store_dwordx4 {v(PK+8,4)}, v15, {WS}, s25 offen sc1')
                A(f's_add_u32 s25, s25, {32*12288}')
                if par == 0: A(f'{skip}:')
            if ks == 15:
                A('s_waitcnt vmcnt(0)')
                A('s_barrier')
                A('v_mov_b32 v17, s31')
                A(f'buffer_store_dword v17, v16, {WS}, 0 offen sc1')
                A('s_add_u32 s30, s24, s28')
                dm = h_dma(A, 's29', 's30')
            if ks >= 15:
                nd = A.lab('nd')
                A('s_cmp_ge_u32 s31, 62'); A(f's_cbranch_scc1 {nd}')
                for f in dm[(ks-15)*2:(ks-14)*2]: f()
                A(f'{nd}:')
        A(f's_add_u32 s29, s29, {HB}')
        A('v_mov_b32 v11, v12')
        A('s_mov_b32 s30, s26'); A('s_mov_b32 s26, s27'); A('s_mov_b32 s27, s28'); A('s_mov_b32 s28, s30')
        A('s_add_u32 s31, s31, 1')
    A('s_cmp_lt_u32 s31, 64'); A(f's_cbranch_scc1 {lp}')
    for x in proj_pack(ACC[1], PK): A(x)
    A(f'buffer_store_dwordx4 {v(PK,4)}, v14, {WS}, s25 offen sc1')
    A(f'buffer_store_dwordx4 {v(PK+4,4)}, v14, {WS}, s25 offen offset:256 sc1')
    A(f'buffer_store_dwordx4 {v(PK+8,4)}, v15, {WS}, s25 offen sc1')
    A('s_waitcnt vmcnt(0) lgkmcnt(0)'); A('s_barrier')
    A('v_mov_b32 v17, 64')
    A(f'buffer_store_dword v17, v16, {WS}, 0 offen sc1')
    A('s_endpgm')

def load_wo(A, shead, swave):
    A(f's_mul_i32 s88, {swave}, 10240')
    lane_expr(A, 'v2', [(0, 6, 16)], 's88')
    A(f's_mul_i32 s87, {shead}, 245760')
    A(f's_mul_i32 s86, {swave}, 320')
    lane_expr(A, 'v5', [(5, 1, 8*1280), (2, 2, 1280), (4, 1, 32), (0, 2, 8)], 's86')
    def dma(blk, off):
        for i in range(10):
            if i % 4 == 0:
                A(f's_add_u32 m0, s88, {off + 4096*(i//4)}')
                A(f's_add_u32 s89, s87, {blk*40960 + 4096*(i//4)}')
            A(f'buffer_load_dwordx4 v2, s[8:11], s89 offen offset:{1024*(i%4)} lds')
    def consume(blk, off):
        A(f'v_add_u32 v7, {off}, v5')
        for k2 in range(2):
            ks = 2*blk + k2
            for T in range(5):
                for z in range(2):
                    A(f'ds_read_b64_tr_b16 {a((T*12+ks)*4 + 2*z, 2)}, v7 offset:{(16*k2 + 4*z)*1280 + 64*T}')
            if k2 == 0: A('s_waitcnt lgkmcnt(4)')
    staged_load(A, 6, 4, 40960, dma, consume, 10)

def role_wo(A, mode, fail):
    load_wo(A, 's20', 's21')
    AS = (64, 112); ACC = (160, 176); PK = (192, 200)
    vo = mode == 'vo'
    if vo:
        lane_expr(A, 'v10', [(0, 2, 16), (2, 1, 128), (3, 1, 64), (4, 1, 256), (5, 1, 512)])
        A('s_mul_i32 s24, s20, 12288'); A(f's_add_u32 s24, s24, {O_VX}')
        A('s_lshl_b32 s25, s20, 9'); A(f's_add_u32 s25, s25, {O_VO}')
        nseg, src, astep, kstride = 64, WS, 32*12288, 1024
        A('s_lshl_b32 s23, s20, 7'); A(f's_add_u32 s32, s23, {O_MB + MB_FLAGS + F_V*128}')
        A('s_lshr_b32 s23, s20, 3'); A('s_lshl_b32 s23, s23, 7'); A('s_and_b32 s26, s20, 7'); A('s_lshl_b32 s26, s26, 2'); A('s_add_u32 s23, s23, s26')
        A(f's_add_u32 s23, s23, {O_MB + MB_FLAGS + F_O*128}')
        lane0_off(A, 'v16', 's23')
        A('s_mov_b32 s33, 0')
    else:
        lane_expr(A, 'v10', [(0, 1, 12288), (1, 1, 8*12288), (2, 1, 4*12288), (3, 1, 2*12288), (4, 1, 16*12288), (5, 1, 16)])
        A('s_mul_i32 s24, s20, 384'); A(f's_mul_i32 s26, s22, {32*12288}'); A('s_add_u32 s24, s24, s26')
        A('s_lshl_b32 s25, s20, 9'); A('s_mul_i32 s26, s22, 1310720'); A('s_add_u32 s25, s25, s26'); A(f's_add_u32 s25, s25, {O_BM}')
        nseg, src, astep, kstride = 4, 's[12:15]', 32*12288, 32
    fl = ' sc1' if vo else ''
    A(f's_mul_i32 s26, s21, {20*16384}')
    lane_expr(A, 'v11', [(3, 2, 16384), (5, 1, 128), (0, 3, 16)], 's26')
    def aload(setb, ks):
        o = ks*kstride
        def f():
            if o >= 4096:
                if o % 4096 == 0: A(f's_add_u32 s27, s24, {o}')
                A(f'buffer_load_dwordx4 {v(setb+4*ks,4)}, v10, {src}, s27 offen offset:{o % 4096}{fl}')
            else:
                A(f'buffer_load_dwordx4 {v(setb+4*ks,4)}, v10, {src}, s24 offen offset:{o}{fl}')
        return f
    def epi(ti, sreg):
        acc, pk = ACC[ti & 1], PK[ti & 1]
        o = [f'v_cvt_pk_bf16_f32 {v(pk+i)}, {v(acc+2*i)}, {v(acc+2*i+1)}' for i in range(4)]
        o.append(f'buffer_store_dwordx4 {v(pk,4)}, v11, {WS}, {sreg} offen{fl}')
        o += [f'v_cvt_pk_bf16_f32 {v(pk+i)}, {v(acc+2*i)}, {v(acc+2*i+1)}' for i in range(4, 8)]
        o.append(f'buffer_store_dwordx4 {v(pk+4,4)}, v11, {WS}, {sreg} offen offset:256{fl}')
        return o
    if vo: flag_wait(A, 4, 's32', 0, 's33', fail)
    for ks in range(12): aload(AS[0], ks)()
    A(f's_add_u32 s24, s24, {astep}')
    A('s_mov_b32 s31, 0')
    A('s_mov_b32 s28, 0x20000000')
    A('s_waitcnt vmcnt(0)')
    lp = A.lab('wo')
    A(f'{lp}:')
    for par in range(2):
        cur, nxt = AS[par], AS[1-par]
        A('s_waitcnt vmcnt(6)')
        if vo:
            A('s_barrier')
            A('s_sub_u32 s26, s31, 1'); A('s_max_i32 s26, s26, 0')
            A('v_mov_b32 v17, s26')
            A(f'buffer_store_dword v17, v16, {WS}, 0 offen sc1')
            A('s_add_u32 s26, s31, 1'); A('s_min_u32 s26, s26, 63')
            flag_wait(A, 4, 's32', 's26', 's33', fail)
        A(f's_cmp_ge_u32 s31, {nseg-1}'); A('s_cselect_b32 s24, 0x20000000, s24')
        for T in range(5):
            ti = par*5 + T
            d = v(ACC[ti & 1], 16)
            mf = [f'v_mfma_f32_32x32x16_bf16 {d}, {v(cur+4*ks,4)}, {a((T*12+ks)*4,4)}, {d if ks else 0}' for ks in range(12)]
            f1 = [aload(nxt, 4*T + i) for i in range(4)] if T < 3 else ['s_nop 0']*4
            f1 += ['s_nop 0', 's_nop 0']
            interleave(A, mf[:6], f1)
            interleave(A, mf[6:], epi(ti - 1, 's28'), per=2)
            A(f's_add_u32 s28, s25, {T*65536}')
        A(f's_add_u32 s24, s24, {astep}')
        A('s_add_u32 s25, s25, 1310720')
        A('s_add_u32 s31, s31, 1')
    A(f's_cmp_lt_u32 s31, {nseg}'); A(f's_cbranch_scc1 {lp}')
    for x in epi(9, 's28'): A(x)
    if vo:
        A('s_waitcnt vmcnt(0)'); A('s_barrier')
        A('v_mov_b32 v17, 64')
        A(f'buffer_store_dword v17, v16, {WS}, 0 offen sc1')
    A('s_endpgm')
```

```python
import sys
from common import *
import small, workers, gemm, rec

HEADER = open('interleave_layers__memory_aug_recurrent_mem_tr__mixer_token_mlp__prompt.s.ref').read().split('; Override launch')[0]

def prologue(A, nwg):
    A(f's_cmp_ge_u32 s2, {nwg}')
    ok = A.lab('go')
    A(f's_cbranch_scc0 {ok}')
    A('s_endpgm')
    A(f'{ok}:')
    srd(A, 4, KA_WS, WS_SIZE)
    wave_id(A, 's21')

def mb_init_task(A, st):
    fl = A.lab('mbf'); go = A.lab('mbgo'); end = A.lab('mbend')
    lane_expr(A, 'v3', [(0, 6, 16)])
    A(f's_cmp_eq_u32 {st}, 24'); A(f's_cbranch_scc1 {fl}')
    for i in range(32): A(f'v_mov_b32 {v(16+i)}, -1')
    A(f's_cmp_ge_u32 {st}, 2'); A(f's_cbranch_scc1 {go}')
    lane_expr(A, 'v2', [(0, 3, 1280), (3, 3, 16)])
    A(f's_lshl_b32 s90, {st}, 10')
    for i in range(2): A(f'buffer_load_dwordx4 {v(16+4*i,4)}, v2, s[16:19], s90 offen offset:{128*i}')
    A('s_waitcnt vmcnt(0)')
    for i in range(8): A(f'v_min_u32 {v(16+i)}, -2, {v(16+i)}')
    A(f's_cmp_eq_u32 {st}, 1'); A(f's_cbranch_scc1 {go}')
    for i in range(2, 8): A(f'buffer_load_dwordx4 {v(16+4*i,4)}, v2, s[16:19], s90 offen offset:{128*i}')
    A('s_waitcnt vmcnt(0)')
    for i in range(8, 32): A(f'v_min_u32 {v(16+i)}, -2, {v(16+i)}')
    A(f'{go}:')
    A(f's_mul_hi_u32 s90, {st}, 0x2aaaaaab'); A('s_mul_i32 s91, s90, 6'); A(f's_sub_u32 s91, {st}, s91')
    A(f's_mul_i32 s90, s90, {rec.SLOT}'); A('s_lshl_b32 s91, s91, 14'); A('s_add_u32 s90, s90, s91'); A(f's_add_u32 s90, s90, {O_MB}')
    A(f's_branch {end}')
    A(f'{fl}:')
    for i in range(32): A(f'v_mov_b32 {v(16+i)}, 0')
    A(f's_mov_b32 s90, {O_MB + MB_FLAGS}')
    A(f'{end}:')
    for i in range(16):
        A(f'buffer_store_dwordx4 {v(16+4*(i%8),4)}, v3, {WS}, s90 offen offset:{1024*(i%4)}')
        if i % 4 == 3: A('s_add_u32 s90, s90, 4096')

def k_prep():
    A = Asm(); A.uid = 1000
    prologue(A, 256)
    other = A.lab('other')
    A(f's_cmp_ge_u32 s2, 160'); A(f's_cbranch_scc1 {other}')
    srd(A, 8, KA_WO, SZ_W); srd(A, 12, KA_WV, SZ_W)
    A('s_and_b32 s20, s2, 31'); A('s_lshr_b32 s22, s2, 5'); A('s_lshl_b32 s22, s22, 2')
    A('s_waitcnt lgkmcnt(0)')
    workers.role_wo(A, 'bm', None)
    A(f'{other}:')
    srd(A, 8, KA_X, SZ_X); srd(A, 12, KA_W1, SZ_W1); srd(A, 16, KA_MEM0, 10240); srd(A, 24, KA_W2, SZ_W1)
    A('s_sub_u32 s20, s2, 160'); A('s_lshl_b32 s20, s20, 2'); A('s_add_u32 s20, s20, s21')
    A('s_mul_i32 s23, s21, 16384')
    A('s_waitcnt lgkmcnt(0)')
    lp = A.lab('tl'); nx = A.lab('nx'); l1 = A.lab('t1'); l2 = A.lab('t2'); l3 = A.lab('t3')
    A(f'{lp}:')
    A('s_cmp_ge_u32 s20, 256'); A(f's_cbranch_scc1 {l1}')
    small.ln_task(A, 'x', 's20'); A(f's_branch {nx}')
    A(f'{l1}:'); A('s_cmp_ge_u32 s20, 281'); A(f's_cbranch_scc1 {l2}')
    A('s_sub_u32 s22, s20, 256'); mb_init_task(A, 's22'); A(f's_branch {nx}')
    A(f'{l2}:'); A(f's_cmp_ge_u32 s20, {281+768}'); A(f's_cbranch_scc1 {l3}')
    A('s_sub_u32 s22, s20, 281'); small.wt_task(A, 's22', 's[12:15]', 1536, O_W1T, 's23'); A(f's_branch {nx}')
    A(f'{l3}:')
    A(f's_sub_u32 s22, s20, {281+768}'); small.wt_task(A, 's22', 's[24:27]', 2048, O_W2T, 's23')
    A(f'{nx}:')
    A('s_add_u32 s20, s20, 384'); A(f's_cmp_lt_u32 s20, {281+1536}'); A(f's_cbranch_scc1 {lp}')
    A('s_endpgm')
    return A

def k_attn(roles='SCKVOQ', parity=0):
    A = Asm(); A.uid = 2000
    prologue(A, 256)
    fail = 'attn_fail'
    A(f's_mov_b32 s19, {parity*8192}')
    A('s_and_b32 s16, s2, 7'); A('s_lshr_b32 s17, s2, 3')
    lS, lC, lW, lO, lQ, lX = [A.lab(n) for n in ('rS', 'rC', 'rW', 'rO', 'rQ', 'rX')]
    A('s_cmp_eq_u32 s16, 0'); A(f's_cbranch_scc1 {lS}')
    A('s_cmp_lt_u32 s16, 4'); A(f's_cbranch_scc1 {lC}')
    A('s_sub_u32 s20, s16, 4'); A('s_lshl_b32 s20, s20, 3'); A('s_and_b32 s18, s17, 7'); A('s_add_u32 s20, s20, s18')
    A('s_lshr_b32 s18, s17, 3')
    A('s_cmp_eq_u32 s18, 2'); A(f's_cbranch_scc1 {lO}')
    A('s_cmp_eq_u32 s18, 3'); A(f's_cbranch_scc1 {lQ}')
    if 'K' in roles:
        A('s_lshl_b32 s22, s18, 3'); A(f's_add_u32 s22, s22, {KA_WK}')
        A('s_load_dwordx2 s[8:9], s[0:1], s22'); A(f's_mov_b32 s10, {SZ_W}'); A('s_mov_b32 s11, 0x20000')
        A(f's_mul_i32 s22, s18, {O_VX - O_KX}'); A(f's_add_u32 s22, s22, {O_KX}')
        A(f's_mul_i32 s23, s18, {(F_V - F_K)}'); A('s_add_u32 s23, s23, s20'); A('s_lshl_b32 s23, s23, 7'); A(f's_add_u32 s23, s23, {O_MB + MB_FLAGS + F_K*128}')
        A('s_waitcnt lgkmcnt(0)')
        workers.role_proj(A, fail)
    else: A('s_endpgm')
    A(f'{lO}:')
    if 'O' in roles:
        srd(A, 8, KA_WO, SZ_W); A('s_waitcnt lgkmcnt(0)')
        workers.role_wo(A, 'vo', fail)
    else: A('s_endpgm')
    A(f'{lQ}:')
    if 'Q' in roles:
        srd(A, 8, KA_WQ, SZ_W); A('s_waitcnt lgkmcnt(0)')
        rec.role_wq(A, fail)
    else: A('s_endpgm')
    A(f'{fail}:')
    A(f's_load_dwordx2 s[8:9], s[0:1], {KA_DBG}')
    A('v_mov_b32 v1, 0'); A('v_mov_b32 v2, s2'); A('v_or_b32 v2, 0x10000, v2'); A('v_mov_b32 v3, s31')
    A('s_waitcnt vmcnt(0) lgkmcnt(0)')
    A('global_store_dwordx2 v1, v[2:3], s[8:9]')
    A('s_endpgm')
    A(f'{lC}:')
    if 'C' in roles:
        A('s_sub_u32 s20, s16, 1'); A('s_mul_i32 s20, s20, 27'); A('s_add_u32 s20, s20, s17')
        A('s_cmp_ge_u32 s17, 27'); A(f's_cbranch_scc1 {lX}')
        A('s_cmp_ge_u32 s20, 80'); A(f's_cbranch_scc1 {lX}')
        A('s_waitcnt lgkmcnt(0)')
        rec.role_c(A, fail)
    A(f'{lX}:')
    A('s_endpgm')
    A(f'{lS}:')
    if 'S' in roles:
        srd(A, 8, KA_WQ, SZ_W); srd(A, 12, KA_WK, SZ_W)
        A('s_mov_b32 s20, s17'); A('s_waitcnt lgkmcnt(0)')
        rec.role_s(A, fail)
    else: A('s_endpgm')
    return A

def k_pz():
    A = Asm(); A.uid = 3000
    prologue(A, 512)
    A('s_and_b32 s20, s2, 7'); A('s_lshr_b32 s23, s2, 6'); A('s_lshl_b32 s23, s23, 3'); A('s_add_u32 s20, s20, s23')
    A('s_lshr_b32 s22, s2, 3'); A('s_and_b32 s22, s22, 7')
    A('s_waitcnt lgkmcnt(0)')
    gemm.task_pz(A); A('s_endpgm')
    return A

def k_ln(mode, uid):
    A = Asm(); A.uid = uid
    n = 256 + (25 if mode == 'h' else 0)
    prologue(A, n)
    if mode == 'h':
        srd(A, 16, KA_MEM0, 10240)
        l = A.lab('ln')
        A('s_waitcnt lgkmcnt(0)')
        A('s_cmp_lt_u32 s2, 256'); A(f's_cbranch_scc1 {l}')
        A('s_sub_u32 s22, s2, 256'); mb_init_task(A, 's22'); A('s_endpgm')
        A(f'{l}:')
    else: A('s_waitcnt lgkmcnt(0)')
    small.ln_task(A, mode, 's2', 0); A('s_endpgm')
    return A

def gtile(A):
    A('s_and_b32 s20, s2, 7'); A('s_lshl_b32 s20, s20, 2'); A('s_lshr_b32 s23, s2, 6'); A('s_add_u32 s20, s20, s23')
    A('s_lshr_b32 s22, s2, 3'); A('s_and_b32 s22, s22, 7')

def k_g1():
    A = Asm(); A.uid = 5000
    prologue(A, 256); srd(A, 8, KA_B1, 3072); gtile(A); A('s_waitcnt lgkmcnt(0)')
    gemm.task_g1(A); A('s_endpgm')
    return A

def k_g2(final):
    A = Asm(); A.uid = 6000 + 500*final
    prologue(A, 256); srd(A, 8, KA_B2, 4096); srd(A, 12, KA_OUT, SZ_X); gtile(A); A('s_waitcnt lgkmcnt(0)')
    gemm.task_g2(A, final); A('s_endpgm')
    return A

def assemble(launches, kernels):
    t = HEADER
    for (n, g, b, l) in launches: t += f'; @launch kernel={n} grid=({g},1,1) block=({b},1,1) lds={l}\n'
    t += '.amdgcn_target "amdgcn-amd-amdhsa--gfx950"\n.text\n'
    for n, (A, tot, acc) in kernels.items(): t += kernel_text(n, A)
    t += '.section .rodata,"a"\n'
    for n, (A, tot, acc) in kernels.items(): t += '.p2align 6\n' + kd(n, tot, acc)
    return t

def full(parity=0):
    K = {'prep_kernel': (k_prep(), 512, 256), 'attn_kernel': (k_attn(parity=parity), 512, 256), 'pz_kernel': (k_pz(), 512, 256),
         'lnt_kernel': (k_ln('t', 4000), 256, 256), 'lnh_kernel': (k_ln('h', 4500), 256, 256),
         'g1_kernel': (k_g1(), 512, 256), 'g2a_kernel': (k_g2(0), 512, 256), 'g2b_kernel': (k_g2(1), 512, 256)}
    LA = [('attn_kernel', 256, 256, 163840), ('pz_kernel', 512, 256, 43008), ('lnt_kernel', 256, 64, 10496), ('g1_kernel', 256, 256, 66560)]
    L = [('prep_kernel', 256, 256, 163840)] + LA + [('g2a_kernel', 256, 256, 86016), ('lnh_kernel', 281, 64, 0)] + LA + [('g2b_kernel', 256, 256, 86016)]
    return assemble(L, K)

if __name__ == '__main__':
    out = sys.argv[1] if len(sys.argv) > 1 else 'interleave_layers__memory_aug_recurrent_mem_tr__mixer_token_mlp__prompt.s'
    par = int(sys.argv[2]) if len(sys.argv) > 2 else 0
    t = full(par)
    open(out, 'w').write(t)
    print(len(t), 'bytes', t.count('\n'), 'lines')
```

```python
from asmlib import *

KA_X, KA_MEM0, KA_WQ, KA_WK, KA_WV, KA_WO = 0, 8, 16, 24, 32, 40
KA_W1, KA_B1, KA_W2, KA_B2, KA_OUT, KA_DBG, KA_WS = 64, 72, 80, 88, 96, 104, 112
SZ_X = 2048*640*2
SZ_W = 640*6144*2
SZ_W1 = 2048*1536*2

WS_SIZE = 268435456
def _al(x, a=1 << 16): return (x + a - 1) // a * a
_o = 0
def _alloc(n):
    global _o
    r = _o; _o = _al(_o + n); return r
O_MB   = _alloc(1 << 21)
O_H    = _alloc(SZ_X)
O_X1   = _alloc(SZ_X)
O_X2   = _alloc(SZ_X)
O_H2T  = _alloc(SZ_X)
O_G    = _alloc(640*1536*2)
O_W1T  = _alloc(SZ_W1)
O_W2T  = _alloc(SZ_W1)
O_BM   = _alloc(20*1310720)
O_KX   = _alloc(64*32*12288)
O_VX   = _alloc(64*32*12288)
O_VO   = _alloc(64*1310720)
O_YZ   = _alloc(64*80*4096)
O_KM   = _alloc(64*32*6144)
O_PX   = _alloc(64*32*2560)
O_END  = _o
assert O_END <= WS_SIZE
MB_FLAGS = 1 << 20
F_K, F_V, F_O, F_M = 0, 32, 64, 96
NFLAGS = 128
MB_PAR = 0x180000
MB_PROBE = 0x1c0000

SPIN = 200000

WS = 's[4:7]'
def srd(A, sreg, ka, size):
    A(f's_load_dwordx2 s[{sreg}:{sreg+1}], s[0:1], {ka}')
    A(f's_mov_b32 s{sreg+2}, {size}')
    A(f's_mov_b32 s{sreg+3}, 0x20000')

def lane_expr(A, dst, terms, const=0, src='v0', tmp='v255', st='s101'):
    first = True
    if isinstance(const, str) or const != 0 or not terms:
        A(f'v_mov_b32 {dst}, {const}'); first = False
    for (sh, bits, mul) in terms:
        if mul == 0: continue
        t = tmp
        A(f'v_bfe_u32 {t}, {src}, {sh}, {bits}')
        assert 0 < mul < (1 << 24)
        if mul & (mul - 1) == 0:
            k = mul.bit_length() - 1
            if first: A(f'v_lshlrev_b32 {dst}, {k}, {t}')
            else: A(f'v_lshl_add_u32 {dst}, {t}, {k}, {dst}')
        else:
            if first: A(f'v_mul_u32_u24 {dst}, {mul}, {t}')
            else:
                A(f's_mov_b32 {st}, {mul}')
                A(f'v_mad_u32_u24 {dst}, {t}, {st}, {dst}')
        first = False

def wave_id(A, sdst, tmp='v255'):
    A(f'v_lshrrev_b32 {tmp}, 6, v0')
    A(f'v_readfirstlane_b32 {sdst}, {tmp}')

class VM:
    def __init__(self, A): self.A = A; self.q = []
    def op(self, text, tag=None):
        self.A(text); self.q.append(tag)
    def count_after(self, tag):
        idx = max(i for i, t in enumerate(self.q) if t == tag)
        return len(self.q) - 1 - idx
    def wait(self, tag):
        if tag not in self.q: return
        n = self.count_after(tag)
        assert n <= 63, n
        self.A(f's_waitcnt vmcnt({n})')
        self.q = self.q[len(self.q) - n:]
    def drain(self):
        self.A('s_waitcnt vmcnt(0)'); self.q = []

def interleave(A, main, fill, start=0, per=1):
    def em(x):
        if callable(x): x()
        else: A(x)
    fill = list(fill)
    for i, m in enumerate(main):
        em(m)
        if i >= start:
            for _ in range(per):
                if fill: em(fill.pop(0))
    for f in fill: em(f)

def flag_wait(A, sbase, soff, need, scur, fail, cnt='s100'):
    done = A.lab('fw_done'); lp = A.lab('fw')
    A(f's_cmp_gt_u32 {scur}, {need}')
    A(f's_cbranch_scc1 {done}')
    A(f's_mov_b32 {cnt}, 0')
    A(f'{lp}:')
    A(f's_load_dword {scur}, s[{sbase}:{sbase+1}], {soff} glc')
    A(f's_add_u32 {cnt}, {cnt}, 1')
    A(f's_cmp_gt_u32 {cnt}, {SPIN}')
    A(f's_cbranch_scc1 {fail}')
    A('s_waitcnt lgkmcnt(0)')
    A(f's_cmp_gt_u32 {scur}, {need}')
    A(f's_cbranch_scc0 {lp}')
    A(f'{done}:')

def lane0_off(A, dst, soff):
    A(f'v_mov_b32 {dst}, 0x80000000'); A(f'v_mov_b32 v255, {soff}')
    A('v_cmp_eq_u32 vcc, 0, v0'); A(f'v_cndmask_b32 {dst}, {dst}, v255, vcc')


O_TR = O_END
TRACE = False
class Tr:
    def __init__(self, A, vd, vo, tmp):
        self.A = A; self.vd = vd; self.vo = vo
        if not TRACE: return
        A('s_lshl_b32 s84, s2, 2'); A('s_add_u32 s84, s84, s21'); A('s_lshl_b32 s84, s84, 12'); A(f's_add_u32 s84, s84, {O_TR}')
        lane_expr(A, vo, [(0, 6, 4)], tmp=tmp)
        A(f'v_and_b32 {tmp}, 63, v0'); A(f'v_cmp_gt_u32 vcc, 12, {tmp}'); A(f'v_mov_b32 {tmp}, 0x80000000'); A(f'v_cndmask_b32 {vo}, {tmp}, {vo}, vcc')
        for k in range(24): A(f's_mov_b32 s{60+k}, 0')
    def t(self, k, real=False):
        if TRACE: self.A(f's_mem{"real" if real else ""}time s[{60+2*k}:{61+2*k}]')
    def val(self, k, sreg):
        if TRACE: self.A(f's_mov_b32 s{60+2*k}, {sreg}')
    def flush(self):
        if not TRACE: return
        A = self.A
        A('s_waitcnt lgkmcnt(0)')
        for k in range(12): A(f'v_writelane_b32 {self.vd}, s{60+2*k}, {k}')
        A(f'buffer_store_dword {self.vd}, {self.vo}, {WS}, s84 offen')
        A('s_add_u32 s84, s84, 64')
```

```python
from common import *
from workers import *
import struct, math
f2h = lambda x: hex(struct.unpack('<I', struct.pack('<f', x))[0])
CSC = 192 ** -0.5 * math.log2(math.e)
NEG = -1e9 * math.log2(math.e)

SLOT = 131072
PBLK = 2

def xg_reduce(A, op, r, t, steps=(16, 32)):
    for st in steps:
        A(f'v_mov_b32 {v(t)}, {v(r)}')
        A(f'v_permlane{st}_swap_b32 {v(t)}, {v(r)}')
        A(f'{op} {v(r)}, {v(r)}, {v(t)}')

def role_wq(A, fail):
    WB = 256
    load_proj_weights(A, 's[8:11]', 's20', 's21', WB)
    ACC = 64; BOP = 112; PK = 144; KXR = 160; KMR = 208; QB = 2*HB
    A('s_mul_i32 s24, s21, 10240')
    lane_expr(A, 'v9', [(0, 6, 16)], 's24')
    lane_expr(A, 'v10', [(4, 2, 512), (0, 4, 16)])
    proj_out_addr(A, 'v14', 'v15', 's21')
    A(f'v_add_u32 v14, {QB}, v14'); A(f'v_add_u32 v15, {QB}, v15')
    lane_expr(A, 'v16', [(4, 2, 512), (2, 2, 128), (0, 2, 16)])
    lane_expr(A, 'v17', [(0, 6, 16)])
    lane_expr(A, 'v18', [(4, 2, 512), (0, 4, 16), (6, 1, 256)], QB)
    lane_expr(A, 'v19', [(4, 2, 512), (0, 4, 16), (6, 1, 256)], 512)
    lane_expr(A, 'v20', [(4, 1, 8), (5, 1, 4), (0, 4, 16), (6, 1, 256)])
    lane_expr(A, 'v21', [(0, 4, 1), (6, 1, 16)]); lane_expr(A, 'v22', [(4, 2, 8)])
    A('v_sub_u32 v21, v21, v22')
    for p in range(8): A(f'v_cmp_le_i32 s[{40+2*p}:{41+2*p}], {p}, v21')
    A(f'v_mov_b32 v23, {f2h(NEG)}'); A(f's_mov_b32 s56, {f2h(CSC)}')
    A('s_mul_i32 s25, s20, 12288'); A(f's_add_u32 s25, s25, {O_KX}')
    A('s_mul_i32 s26, s20, 6144'); A(f's_add_u32 s26, s26, {O_KM}')
    A('s_mul_i32 s27, s20, 2560'); A(f's_add_u32 s27, s27, {O_PX}')
    A('s_lshl_b32 s32, s20, 7'); A(f's_add_u32 s33, s32, {O_MB + MB_FLAGS + F_K*128}'); A(f's_add_u32 s32, s32, {O_MB + MB_FLAGS + F_M*128}')
    A('s_mov_b32 s34, 0'); A('s_mov_b32 s35, 0')
    A(f's_mov_b32 s29, {O_H}'); A('s_mov_b32 s28, 0')
    for f in h_dma(A, 's29', 's24'): f()
    A('s_mov_b32 s31, 0')
    tr = Tr(A, 'v1', 'v2', 'v255')
    lp = A.lab('wq'); nosc = A.lab('nosc'); nold = A.lab('nold'); nd = A.lab('nd')
    A(f'{lp}:')
    A('s_waitcnt vmcnt(0)'); A('s_barrier')
    A('v_add_u32 v11, s28, v10')
    A(f's_xor_b32 s28, s28, {HB}'); A(f's_add_u32 s29, s29, {HB}')
    A('s_cmp_ge_u32 s31, 63'); A(f's_cbranch_scc1 {nd}')
    A('s_add_u32 s30, s24, s28')
    for f in h_dma(A, 's29', 's30'): f()
    A(f'{nd}:')
    A('s_cmp_ge_u32 s21, 2'); A(f's_cbranch_scc1 {nold}')
    flag_wait(A, 4, 's33', 's31', 's34', fail)
    for ks in range(6):
        if ks % 2 == 0: A(f's_add_u32 s30, s25, {ks*2048}')
        for t in range(2):
            A(f'buffer_load_dwordx4 {v(KXR+8*ks+4*t,4)}, v16, {WS}, s30 offen offset:{(ks%2)*2048 + 64*t} sc1')
    flag_wait(A, 4, 's32', 's31', 's35', fail)
    A('s_add_u32 s30, s26, 4096')
    for ks in range(6):
        A(f'buffer_load_dwordx4 {v(KMR+4*ks,4)}, v17, {WS}, {"s26" if ks < 4 else "s30"} offen offset:{(ks%4)*1024} sc1')
    A(f'{nold}:')
    for k in range(2):
        A(f'ds_read_b128 {v(BOP+8*k,4)}, v11 offset:{k*2048}')
        A(f'ds_read_b128 {v(BOP+8*k+4,4)}, v11 offset:{k*2048+256}')
    for g in proj_mfmas(A, WB, ACC, BOP, 'v11', None):
        for x in g: A(x)
    for x in proj_pack(ACC, PK): A(x)
    A(f'ds_write_b128 v14, {v(PK,4)}'); A(f'ds_write_b128 v14, {v(PK+4,4)} offset:256'); A(f'ds_write_b128 v15, {v(PK+8,4)}')
    A('s_waitcnt lgkmcnt(0)'); A('s_barrier')
    A('s_cmp_ge_u32 s21, 2'); A(f's_cbranch_scc1 {nosc}')
    for ks in range(6): A(f'ds_read_b128 {v(BOP+4*ks,4)}, v18 offset:{ks*2048}')
    A('s_waitcnt vmcnt(0)')
    S = 88
    for ks in range(6):
        A(f's_waitcnt lgkmcnt({5-ks})')
        for t, src in enumerate((KXR+8*ks, KXR+8*ks+4, KMR+4*ks)):
            d = v(S+4*t, 4)
            A(f'v_mfma_f32_16x16x32_bf16 {d}, {v(src,4)}, {v(BOP+4*ks,4)}, {d if ks else 0}')
    A(f'v_permlane32_swap_b32 {v(S+8)}, {v(S+10)}'); A(f'v_permlane32_swap_b32 {v(S+9)}, {v(S+11)}')
    A(f'v_pk_add_f32 {v(S+8,2)}, {v(S+8,2)}, {v(S+10,2)}')
    for i in range(10): A(f'v_mul_f32 {v(S+i)}, s56, {v(S+i)}')
    for p in range(8): A(f'v_cndmask_b32 {v(S+p)}, v23, {v(S+p)}, s[{40+2*p}:{41+2*p}]')
    A(f'v_max3_f32 v24, {v(S)}, {v(S+1)}, {v(S+2)}')
    for i in range(3, 9, 2): A(f'v_max3_f32 v24, v24, {v(S+i)}, {v(S+i+1)}')
    A(f'v_max_f32 v24, v24, {v(S+9)}')
    xg_reduce(A, 'v_max_f32', 24, 25)
    for i in range(10): A(f'v_sub_f32 {v(S+i)}, {v(S+i)}, v24')
    for i in range(10): A(f'v_exp_f32 {v(S+i)}, {v(S+i)}')
    A(f'v_add_f32 v24, {v(S)}, {v(S+1)}')
    for i in range(2, 10): A(f'v_add_f32 v24, v24, {v(S+i)}')
    xg_reduce(A, 'v_add_f32', 24, 25)
    A('v_rcp_f32 v24, v24')
    for i in range(10): A(f'v_mul_f32 {v(S+i)}, {v(S+i)}, v24')
    for i in range(5): A(f'v_cvt_pk_bf16_f32 {v(100+i)}, {v(S+2*i)}, {v(S+2*i+1)}')
    A(f'buffer_store_dwordx4 v[100:103], v19, {WS}, s27 offen sc1')
    A(f'buffer_store_dword v104, v20, {WS}, s27 offen sc1')
    A(f'{nosc}:')
    tr.t(5, True); tr.flush()
    A(f's_add_u32 s25, s25, {32*12288}'); A(f's_add_u32 s26, s26, {32*6144}'); A(f's_add_u32 s27, s27, {32*2560}')
    A('s_add_u32 s31, s31, 1'); A('s_cmp_lt_u32 s31, 64'); A(f's_cbranch_scc1 {lp}')
    A('s_endpgm')

def ring_init(A):
    for k in range(4): A(f's_add_u32 s{36+k}, s19, {O_MB + k*SLOT}')
def ring_step(A):
    A('s_mov_b32 s30, s36'); A('s_mov_b32 s36, s37'); A('s_mov_b32 s37, s38'); A('s_mov_b32 s38, s39'); A('s_mov_b32 s39, s30')

def m_addr(A, va, vb, lds_m):
    lane_expr(A, va, [(0, 8, 16)])
    lane_expr(A, vb, [(0, 8, 8)])

def m_gather(A, va, vb, r, lds_m, fail):
    lp = A.lab('mg')
    A('s_add_u32 s57, s36, 4096'); A('s_add_u32 s58, s36, 16384')
    A('s_mov_b32 s100, 0')
    A(f'{lp}:')
    A(f'buffer_load_dwordx4 {v(r,4)}, {va}, {WS}, s36 offen sc1')
    A(f'buffer_load_dwordx4 {v(r+4,4)}, {va}, {WS}, s57 offen sc1')
    A(f'buffer_load_dwordx2 {v(r+8,2)}, {vb}, {WS}, s58 offen sc1')
    A('s_add_u32 s100, s100, 1'); A(f's_cmp_gt_u32 s100, {SPIN}'); A(f's_cbranch_scc1 {fail}')
    A('s_waitcnt vmcnt(2)')
    A(f'ds_write_b128 {va}, {v(r,4)} offset:{lds_m}')
    A(f'v_max3_u32 {v(r+10)}, {v(r)}, {v(r+1)}, {v(r+2)}')
    A('s_waitcnt vmcnt(1)')
    A(f'ds_write_b128 {va}, {v(r+4,4)} offset:{lds_m + 4096}')
    A(f'v_max3_u32 {v(r+10)}, {v(r+10)}, {v(r+3)}, {v(r+4)}')
    A(f'v_max3_u32 {v(r+11)}, {v(r+5)}, {v(r+6)}, {v(r+7)}')
    A('s_waitcnt vmcnt(0)')
    A(f'ds_write_b64 {vb}, {v(r+8,2)} offset:{lds_m + 8192}')
    A(f'v_max3_u32 {v(r+10)}, {v(r+10)}, {v(r+8)}, {v(r+9)}')
    A(f'v_max_u32 {v(r+10)}, {v(r+10)}, {v(r+11)}')
    A(f'v_cmp_eq_u32 vcc, -1, {v(r+10)}')
    A('s_waitcnt lgkmcnt(0)')
    A(f's_cbranch_vccnz {lp}')

class LG:
    def __init__(self, A): self.A = A; self.q = []
    def op(self, text, tag=None): self.A(text); self.q.append(tag)
    def wait(self, tag):
        if tag not in self.q: return
        n = len(self.q) - 1 - max(i for i, t in enumerate(self.q) if t == tag)
        self.A(f's_waitcnt lgkmcnt({min(n, 14)})')
        self.q = self.q[len(self.q) - min(n, 14):] if n else []
    def drain(self): self.A('s_waitcnt lgkmcnt(0)'); self.q = []

def role_c(A, fail):
    import functools, common
    lane_expr = functools.partial(common.lane_expr, tmp='v120')
    WB = 192; ACC = 16; MW = 32; VOR = (48, 64); YR = 80; PR = 84; D = 104; T = 108; IDX = 15
    LM = 0; LD = 10240
    lane_expr(A, 'v2', [(3, 1, 512), (4, 2, 128), (0, 3, 16)])
    A('s_lshl_b32 s24, s20, 14'); A('s_lshl_b32 s25, s21, 12'); A('s_add_u32 s24, s24, s25')
    A(f's_add_u32 s25, s24, {O_BM}')
    for ps in range(20):
        for t in range(4):
            A(f'buffer_load_dwordx4 {u(WB + (t*10 + ps//2)*8 + 4*(ps & 1), 4)}, v2, {WS}, s25 offen offset:{1024*t}')
        A('s_add_u32 s25, s25, 1310720')
        if ps >= 14: A('s_waitcnt vmcnt(56)')
    A(f's_add_u32 s24, s24, {O_VO}')
    lane_expr(A, 'v3', [(0, 8, 16)]); lane_expr(A, 'v4', [(0, 8, 8)])
    lane_expr(A, 'v5', [(0, 6, 16)], LM)
    A(f's_lshl_b32 s25, s21, 14'); A(f's_add_u32 s25, s25, {PBLK*16384}')
    A('s_add_u32 s26, s25, 128')
    lane_expr(A, 'v6', [(3, 1, 640), (4, 2, 128), (0, 3, 16)], 's26')
    lane_expr(A, 'v7', [(3, 1, 640), (4, 2, 1280), (0, 3, 16)], 's25')
    lane_expr(A, 'v8', [(2, 3, 16), (1, 1, 256), (0, 1, 8)], LD)
    A('s_lshl_b32 s25, s20, 7'); A('s_add_u32 s26, s25, 8192'); A('s_cmp_ge_u32 s20, 64'); A('s_cselect_b32 s25, s26, s25')
    lane_expr(A, 'v9', [(0, 5, 4)], 's25')
    A('v_cmp_gt_u32 vcc, 32, v0'); A('v_mov_b32 v10, 0x80000000'); A('v_cndmask_b32 v9, v10, v9, vcc')
    A('v_mov_b32 v10, -1')
    A('v_and_b32 v11, 8, v0'); A('v_cmp_eq_u32 vcc, 0, v11'); A('v_mov_b32 v11, 0xeeee'); A(f'v_mov_b32 {v(IDX)}, 0x4444'); A(f'v_cndmask_b32 {v(IDX)}, v11, {v(IDX)}, vcc')
    A('s_lshl_b32 s27, s20, 12'); A(f's_add_u32 s27, s27, {O_YZ}')
    A('s_lshl_b32 s28, s21, 7'); A(f's_add_u32 s28, s28, {O_MB + MB_FLAGS + F_O*128}')
    ring_init(A)
    lane_expr(A, 'v13', [(0, 3, 4)], 's28')
    def fo_load(): A(f'buffer_load_dword v14, v13, {WS}, 0 offen sc1')
    def fo_wait(need):
        lp = A.lab('fo'); ok = A.lab('fok')
        A(f'v_cmp_ge_u32 vcc, {need}, v14'); A(f's_cbranch_vccz {ok}')
        A('s_mov_b32 s100, 0')
        A(f'{lp}:')
        fo_load()
        A('s_add_u32 s100, s100, 1'); A(f's_cmp_gt_u32 s100, {SPIN}'); A(f's_cbranch_scc1 {fail}')
        A('s_waitcnt vmcnt(0)')
        A(f'v_cmp_ge_u32 vcc, {need}, v14'); A(f's_cbranch_vccnz {lp}')
        A(f'{ok}:')
    def vo_load(r):
        for t in range(4): A(f'buffer_load_dwordx4 {v(r+4*t,4)}, v2, {WS}, s24 offen offset:{1024*t} sc1')
        A('s_add_u32 s24, s24, 1310720')
    fo_load(); A('s_waitcnt vmcnt(0)')
    fo_wait(0); vo_load(VOR[0])
    A('s_mov_b32 s31, 0')
    tr = Tr(A, 'v1', 'v12', 'v120')
    lp = A.lab('c'); done = A.lab('cdone')
    A(f'{lp}:')
    for par in range(2):
        cur, nxt = VOR[par], VOR[1-par]
        fo_load()
        for i in range(16): A(f'v_mov_b32 {v(ACC+i)}, 0')
        tr.t(0)
        m_gather(A, 'v3', 'v4', PR, LM, fail)
        tr.val(6, 's100')
        A('s_barrier')
        tr.t(1)
        nv = A.lab('nv')
        A('s_cmp_ge_u32 s31, 62'); A(f's_cbranch_scc1 {nv}')
        A('s_add_u32 s29, s31, 1')
        fo_wait('s29'); vo_load(nxt)
        A(f'{nv}:')
        A(f'buffer_store_dword v10, v9, {WS}, s39 offen sc1')
        lg = LG(A)
        for k in range(3): lg.op(f'ds_read_b128 {v(MW+4*k,4)}, v5 offset:{1024*k}', k)
        for ks in range(10):
            if ks + 3 < 10: lg.op(f'ds_read_b128 {v(MW+4*((ks+3)%4),4)}, v5 offset:{1024*(ks+3)}', ks+3)
            lg.wait(ks)
            for t in range(4):
                A(f'v_smfmac_f32_16x16x64_bf16 {v(ACC+4*t,4)}, {v(MW+4*(ks%4),4)}, {u(WB+(t*10+ks)*8,8)}, {v(IDX)}')
        for pa, (ta, tb) in enumerate(((0, 2), (1, 3))):
            for r in range(4): A(f'v_permlane32_swap_b32 {v(ACC+4*ta+r)}, {v(ACC+4*tb+r)}')
            for r in range(4): A(f'v_add_f32 {v(ACC+4*ta+r)}, {v(ACC+4*ta+r)}, {v(ACC+4*tb+r)}')
            for z in range(2): A(f'v_cvt_pk_bf16_f32 {v(YR+2*pa+z)}, {v(ACC+4*ta+2*z)}, {v(ACC+4*ta+2*z+1)}')
        A(f'v_permlane16_swap_b32 {v(YR)}, {v(YR+2)}'); A(f'v_permlane16_swap_b32 {v(YR+1)}, {v(YR+3)}')
        if par == 1:
            A('s_cmp_eq_u32 s31, 63'); A(f's_cbranch_scc1 {done}')
        tr.t(2)
        pl = A.lab('pg')
        A('s_mov_b32 s100, 0')
        A(f'{pl}:')
        A(f'buffer_load_dwordx4 {v(PR,4)}, v7, {WS}, s36 offen sc1')
        for t in range(4): A(f'buffer_load_dwordx4 {v(PR+4+4*t,4)}, v6, {WS}, s36 offen offset:{1280*t} sc1')
        A('s_add_u32 s100, s100, 1'); A(f's_cmp_gt_u32 s100, {SPIN}'); A(f's_cbranch_scc1 {fail}')
        for t in range(5):
            A(f's_waitcnt vmcnt({4-t})')
            z = v(YR, 4) if t == 0 else v(cur + 4*(t-1), 4)
            A(f'v_mfma_f32_16x16x32_bf16 {v(D,4)}, {z}, {v(PR+4*t,4)}, {v(D,4) if t else 0}')
            b = PR + 4*t
            if t == 0: A(f'v_max3_u32 {v(T)}, {v(b)}, {v(b+1)}, {v(b+2)}'); A(f'v_max_u32 {v(T)}, {v(T)}, {v(b+3)}')
            else: A(f'v_max3_u32 {v(T)}, {v(T)}, {v(b)}, {v(b+1)}'); A(f'v_max3_u32 {v(T)}, {v(T)}, {v(b+2)}, {v(b+3)}')
        A(f'v_cmp_eq_u32 vcc, -1, {v(T)}')
        A(f's_cbranch_vccnz {pl}')
        A(f'ds_write_b128 v3, {v(D,4)} offset:{LD}')
        A('s_waitcnt lgkmcnt(0)'); A('s_barrier')
        tr.t(3); tr.val(7, 's100')
        nw = A.lab('nw')
        A('s_cmp_lg_u32 s21, 0'); A(f's_cbranch_scc1 {nw}')
        for k in range(8): A(f'ds_read_b64 {v(PR+2*k,2)}, v8 offset:{(k>>1)*1024 + (k&1)*640}')
        for k in range(4):
            A(f's_waitcnt lgkmcnt({6-2*k})')
            A(f'v_pk_add_f32 {v(PR+4*k,2)}, {v(PR+4*k,2)}, {v(PR+4*k+2,2)}')
            if k == 1: A(f'v_pk_add_f32 {v(PR,2)}, {v(PR,2)}, {v(PR+4,2)}')
            if k == 2: A(f'v_pk_add_f32 {v(PR,2)}, {v(PR,2)}, {v(PR+8,2)}')
        A(f'v_pk_add_f32 {v(PR,2)}, {v(PR,2)}, {v(PR+12,2)}')
        A(f'v_cvt_pk_bf16_f32 {v(T)}, {v(PR)}, {v(PR+1)}')
        A(f'v_min_u32 {v(T)}, -2, {v(T)}')
        A(f'buffer_store_dword {v(T)}, v9, {WS}, s37 offen sc1')
        A(f'{nw}:')
        A('s_barrier')
        tr.t(4); tr.t(5, True)
        A(f'buffer_store_dwordx4 {v(YR,4)}, v3, {WS}, s27 offen sc1')
        tr.flush()
        A(f's_add_u32 s27, s27, {80*4096}')
        ring_step(A)
        A('s_add_u32 s31, s31, 1')
    A(f's_branch {lp}')
    A(f'{done}:')
    A(f'buffer_store_dwordx4 {v(YR,4)}, v3, {WS}, s27 offen sc1')
    A('s_endpgm')

def role_s(A, fail):
    WB = 112; AQ = 16; AK = 28; ST = 40; MW = 64; XQ = 80; MI = 104; IDX = 15
    LM = 0; LTQ = 10240; LTK = 13312; LKX = 16384; LW = 81920
    def inlds(mat, t, ks): return t == 2 and (ks & 1)
    wreg = {}; n = 0
    for mat in range(2):
        for t in range(3):
            for ks in range(10):
                if not inlds(mat, t, ks): wreg[mat, t, ks] = WB + 8*n; n += 1
    assert n == 50
    head_dma_setup(A, 's21')
    A('s_mul_i32 s87, s20, 384'); A(f's_mul_i32 s86, s21, {16*12288}'); A('s_add_u32 s87, s87, s86')
    A('s_mul_i32 s86, s21, 96')
    lane_expr(A, 'v5', [(5, 1, 16*384), (4, 1, 4*384), (2, 1, 384), (3, 1, 8*384), (0, 2, 8)], 's86')
    A('s_mul_i32 s86, s21, 20480'); A(f's_add_u32 s86, s86, {LW}')
    lane_expr(A, 'v6', [(0, 6, 16)], 's86')
    dq = head_dma(A, 's[8:11]', 's87', 's21'); dk = head_dma(A, 's[12:15]', 's87', 's21')
    def dma(b, off): (dq if b < 10 else dk)(b % 10, off)
    def consume(b, off):
        mat, ks = b // 10, b % 10
        A(f'v_add_u32 v7, {off}, v5')
        for t in range(3):
            r = ST if inlds(mat, t, ks) else wreg[mat, t, ks]
            for hi in range(2):
                for jp in range(2):
                    A(f'ds_read_b64_tr_b16 {u(r + 4*hi + 2*jp, 2)}, v7 offset:{(32*hi + 2*jp)*384 + 32*t}')
        if ks & 1:
            i = mat*5 + ks//2
            A('s_waitcnt lgkmcnt(0)')
            A(f'ds_write_b128 v6, {v(ST,4)} offset:{2048*i}'); A(f'ds_write_b128 v6, {v(ST+4,4)} offset:{2048*i + 1024}')
    staged_load(A, 20, 3, 24576, dma, consume, 6)
    TM = 'v111'
    lane_expr(A, 'v3', [(0, 8, 16)], tmp=TM); lane_expr(A, 'v4', [(0, 8, 8)], tmp=TM)
    lane_expr(A, 'v5', [(0, 6, 16)], tmp=TM)
    lane_expr(A, 'v7', [(6, 2, 768), (0, 4, 16), (4, 1, 8), (5, 1, 4)], tmp=TM)
    A('v_and_b32 v11, 8, v0'); A('v_cmp_eq_u32 vcc, 0, v11'); A('v_mov_b32 v11, 0xeeee'); A(f'v_mov_b32 {v(IDX)}, 0x4444'); A(f'v_cndmask_b32 {v(IDX)}, v11, {v(IDX)}, vcc')
    ring_init(A)
    A('s_mov_b32 s31, 0')
    A('s_mul_i32 s25, s20, 12288'); A(f's_add_u32 s25, s25, {O_KX}')
    A('s_mul_i32 s26, s20, 3072'); A(f's_add_u32 s26, s26, {O_KM}')
    A('s_lshl_b32 s32, s20, 7'); A(f's_add_u32 s33, s32, {O_MB + MB_FLAGS + F_K*128}'); A(f's_add_u32 s32, s32, {O_MB + MB_FLAGS + F_M*128}')
    A('s_mov_b32 s34, 0'); A(f's_mov_b32 s28, {LKX}')
    def kx_dma():
        for i in range(12):
            if i % 4 == 0:
                A(f's_add_u32 m0, s28, {4096*(i//4)}'); A(f's_add_u32 s89, s25, {4096*(i//4)}')
            A(f'buffer_load_dwordx4 v5, {WS}, s89 offen offset:{1024*(i%4)} sc1 lds')
        A(f's_add_u32 s25, s25, {32*12288}')
    labs = [A.lab('sw') for _ in range(4)]
    for w in range(3):
        A(f's_cmp_eq_u32 s21, {w}'); A(f's_cbranch_scc1 {labs[w]}')
    A(f's_branch {labs[3]}')

    def epilogue(acc, lt, lg, tag):
        o = []
        for t in range(3):
            b = acc + 4*t
            o.append(f'v_permlane32_swap_b32 {v(b)}, {v(b+2)}')
            o.append(f'v_permlane32_swap_b32 {v(b+1)}, {v(b+3)}')
        for t in range(3):
            b = acc + 4*t
            o.append(f'v_add_f32 {v(b)}, {v(b)}, {v(b+2)}')
            o.append(f'v_add_f32 {v(b+1)}, {v(b+1)}, {v(b+3)}')
            o.append(f'v_cvt_pk_bf16_f32 {v(b)}, {v(b)}, {v(b+1)}')
            o.append(lambda b=b, t=t: lg.op(f'ds_write_b32 v7, {v(b)} offset:{lt + 256*t}', tag))
        return o

    for w in range(4):
        A(f'{labs[w]}:')
        if w == 0:
            lane_expr(A, 'v8', [(4, 2, 128), (2, 2, 16), (0, 1, 8)], tmp=TM)
            lane_expr(A, 'v9', [(4, 2, 512), (2, 2, 128), (0, 2, 16)], tmp=TM)
            A('s_lshr_b32 s24, s20, 3'); A('s_lshl_b32 s24, s24, 14'); A('s_and_b32 s27, s20, 7'); A('s_mul_i32 s27, s27, 640')
            A('s_add_u32 s24, s24, s27'); A(f's_add_u32 s24, s24, {PBLK*16384}'); A('s_add_u32 s27, s24, 128')
            A('v_mov_b32 v14, 0x80000000')
            lane_expr(A, 'v10', [(4, 2, 128), (0, 3, 16)], 's27', tmp=TM)
            A('v_and_b32 v11, 8, v0'); A('v_cmp_eq_u32 vcc, 0, v11'); A('v_cndmask_b32 v10, v14, v10, vcc')
            lane_expr(A, 'v12', [(4, 1, 8), (0, 3, 16)], 's24', tmp=TM)
            A('v_and_b32 v11, 40, v0'); A('v_cmp_eq_u32 vcc, 0, v11'); A('v_cndmask_b32 v12, v14, v12, vcc')
            lane_expr(A, 'v13', [(0, 6, 16)], 's24', tmp=TM)
            A('v_cmp_gt_u32 vcc, 40, v0'); A('v_cndmask_b32 v13, v14, v13, vcc')
            A(f's_mov_b32 s56, {f2h(CSC)}')
        if w == 1:
            lane_expr(A, 'v8', [(4, 2, 256), (1, 1, 128), (2, 2, 16), (0, 1, 8)], tmp=TM)
            A('v_mov_b32 v9, 0x80000000'); A('v_mov_b32 v10, s32'); A('v_cmp_eq_u32 vcc, 64, v0'); A('v_cndmask_b32 v9, v9, v10, vcc')
        if w == 2:
            flag_wait(A, 4, 's33', 0, 's34', fail)
            kx_dma()
        tr = Tr(A, 'v1', 'v2', TM)
        lp = A.lab('s'); done = A.lab('sdone')
        A(f'{lp}:')
        tr.t(0)
        lg = LG(A)
        def stage(i):
            for z in range(2): lg.op(f'ds_read_b128 {v(ST + 8*(i%3) + 4*z, 4)}, v6 offset:{2048*i + 1024*z}', ('w', i))
        for i in range(3): stage(i)
        for i in range(24): A(f'v_mov_b32 {v(AQ+i)}, 0')
        m_gather(A, 'v3', 'v4', MW, LM, fail); lg.q = []
        tr.val(6, 's100')
        A('s_barrier')
        tr.t(1)
        def mread(g): lg.op(f'ds_read_b128 {v(MW+4*(g%4),4)}, v5 offset:{LM + 1024*(g%10)}', ('m', g))
        for g in range(3): mread(g)
        qepi = epilogue(AQ, LTQ, lg, 'tq')
        def kxread(i):
            lg.op(f'ds_read_b128 {v(ST + 4*(i%6), 4)}, v11 offset:{(i//2)*2048 + (i&1)*64}', ('kx', i))
        if w == 0: A('v_add_u32 v11, s28, v9')
        for g in range(20):
            mat, ks = g // 10, g % 10
            if g + 3 < 20: mread(g + 3)
            lg.wait(('m', g))
            i = mat*5 + ks//2
            if ks & 1: lg.wait(('w', i))
            mf = []
            for t in range(3):
                r = v(ST + 8*(i%3), 8) if inlds(mat, t, ks) else u(wreg[mat, t, ks], 8)
                mf.append(f'v_smfmac_f32_16x16x64_bf16 {v((AQ, AK)[mat]+4*t,4)}, {v(MW+4*(g%4),4)}, {r}, {v(IDX)}')
            fill = []
            if 12 <= g <= 14: fill = qepi[(g-12)*6:(g-11)*6]
            interleave(A, mf, fill, per=2)
            if (ks & 1) and i + 3 < 10: stage(i + 3)
            if g == 15:
                lg.wait('tq'); A('s_barrier')
            if w == 0 and 16 <= g <= 18:
                for t in range(2*(g-16), 2*(g-15)):
                    for z in range(2): lg.op(f'ds_read_b64_tr_b16 {v(XQ+4*t+2*z,2)}, v8 offset:{LTQ + 512*t + 64*z}', ('xq', t))
            if w == 0 and g == 17:
                for i2 in (2, 3): kxread(i2)
            if w == 0 and g == 18:
                for i2 in (4, 5): kxread(i2)
        tr.t(2)
        kepi = epilogue(AK, LTK, lg, 'tk')
        S = AQ
        if w != 0:
            for x in kepi:
                x() if callable(x) else A(x)
            lg.drain(); A('s_barrier')
        else:
            for i2 in (0, 1): kxread(i2)
            order = [2, 3, 4, 5, 0, 1, 8, 9, 10, 11, 6, 7]
            started = set()
            def smx(i):
                def f():
                    lg.wait(('kx', i)); lg.wait(('xq', i//2))
                    d = v(S + 4*(i & 1), 4)
                    A(f'v_mfma_f32_16x16x32_bf16 {d}, {v(ST+4*(i%6),4)}, {v(XQ+4*(i//2),4)}, {d if (i & 1) in started else 0}')
                    started.add(i & 1)
                    if i < 6: kxread(i + 6)
                return f
            interleave(A, [smx(i) for i in order[:6]], kepi, start=1, per=4)
            lg.wait('tk'); A('s_barrier')
            XK = [MW, MW+4, MW+8, MW+12, AK, AK+4]
            for t in range(6):
                for z in range(2): lg.op(f'ds_read_b64_tr_b16 {v(XK[t]+2*z,2)}, v8 offset:{LTK + 512*t + 64*z}', ('xk', t))
                smx(order[6+t])()
            for t in range(6):
                lg.wait(('xk', t))
                A(f'v_mfma_f32_16x16x32_bf16 {v(S+8,4)}, {v(XK[t],4)}, {v(XQ+4*t,4)}, {v(S+8,4) if t else 0}')
            A('s_cmp_eq_u32 s31, 63'); A(f's_cbranch_scc1 {done}')
            tr.t(3)
            M = MI
            A(f'v_max3_f32 {v(M)}, {v(S)}, {v(S+1)}, {v(S+2)}'); A(f'v_max3_f32 {v(M+1)}, {v(S+3)}, {v(S+4)}, {v(S+5)}')
            A(f'v_max3_f32 {v(M)}, {v(M)}, {v(S+6)}, {v(S+7)}')
            A(f'v_max3_f32 {v(M+1)}, {v(M+1)}, {v(S+8)}, {v(S+9)}'); A(f'v_max3_f32 {v(M)}, {v(M)}, {v(S+10)}, {v(S+11)}')
            A(f'v_max_f32 {v(M)}, {v(M)}, {v(M+1)}')
            xg_reduce(A, 'v_max_f32', M, M+1)
            A(f'v_mul_f32 {v(M)}, s56, {v(M)}')
            for i in range(12): A(f'v_fma_f32 {v(S+i)}, {v(S+i)}, s56, -{v(M)}')
            for i in range(12): A(f'v_exp_f32 {v(S+(i+8)%12)}, {v(S+(i+8)%12)}')
            A(f'v_pk_add_f32 {v(M,2)}, {v(S+8,2)}, {v(S+10,2)}')
            A(f'v_pk_fma_f32 {v(M,2)}, {v(M,2)}, 0.5, {v(S,2)} op_sel_hi:[1,0,1]')
            A(f'v_pk_add_f32 {v(M+2,2)}, {v(S+2,2)}, {v(S+4,2)}')
            A(f'v_pk_add_f32 {v(M,2)}, {v(M,2)}, {v(S+6,2)}')
            A(f'v_pk_add_f32 {v(M,2)}, {v(M,2)}, {v(M+2,2)}')
            A(f'v_add_f32 {v(M)}, {v(M)}, {v(M+1)}')
            xg_reduce(A, 'v_add_f32', M, M+1)
            A(f'v_rcp_f32 {v(M)}, {v(M)}')
            for i in range(6):
                A(f'v_pk_mul_f32 {v(S+2*i,2)}, {v(S+2*i,2)}, {v(M,2)} op_sel_hi:[1,0] clamp')
                A(f'v_cvt_pk_bf16_f32 {v(ST+i)}, {v(S+2*i)}, {v(S+2*i+1)}')
                if i == 3: A(f'buffer_store_dwordx4 {v(ST,4)}, v10, {WS}, s36 offen sc1')
            A(f'buffer_store_dwordx2 {v(ST+4,2)}, v12, {WS}, s36 offen sc1')
            tr.t(4); tr.t(5, True)
            for i in range(4): A(f'v_mov_b32 {v(M+i)}, -1')
            A(f'buffer_store_dwordx4 {v(M,4)}, v13, {WS}, s38 offen sc1')
        if w == 1:
            for t in range(3):
                for z in range(2): A(f'ds_read_b64_tr_b16 {v(XQ+4*t+2*z,2)}, v8 offset:{LTK + 1024*t + 64*z}')
            A('s_add_u32 s29, s31, 1'); A('v_mov_b32 v10, s29')
            A('s_waitcnt lgkmcnt(0)')
            for t in range(3): A(f'buffer_store_dwordx4 {v(XQ+4*t,4)}, v5, {WS}, s26 offen offset:{1024*t} sc1')
            A(f's_add_u32 s26, s26, {32*3072}')
            A('s_waitcnt vmcnt(0)')
            A(f'buffer_store_dword v10, v9, {WS}, 0 offen sc1')
        A(f's_xor_b32 s28, s28, {LKX ^ (LKX + 12288)}')
        if w == 2:
            nk = A.lab('nk')
            A('s_cmp_ge_u32 s31, 62'); A(f's_cbranch_scc1 {nk}')
            A('s_add_u32 s29, s31, 1')
            flag_wait(A, 4, 's33', 's29', 's34', fail)
            kx_dma()
            A(f'{nk}:')
        ring_step(A)
        tr.t(7); tr.flush()
        A('s_add_u32 s31, s31, 1'); A('s_cmp_lt_u32 s31, 64'); A(f's_cbranch_scc1 {lp}')
        A(f'{done}:')
        A('s_endpgm')
```

```python
from common import *
from workers import *
from rec import f2h, CSC, NEG, SLOT, PBLK, xg_reduce, ring_init, ring_step, LG
import functools, common

class P:
    db = True
    ringS = 68
    ringC = 3
    gapS = 0
    ringW = 3; a1 = 3; a2 = 7; ringJ = 40; ringH = 16; stat = 0
    ga = 8; gb = 0; st1 = 28; st2 = 45

DBO = O_MB + 4*SLOT
def db_c_line(A, sd, sj):
    A(f's_lshl_b32 {sd}, {sj}, 7'); A(f's_add_u32 s101, {sd}, 8192'); A(f's_cmp_ge_u32 {sj}, 64'); A(f's_cselect_b32 {sd}, s101, {sd}')
    A(f's_add_u32 {sd}, {sd}, s19'); A(f's_add_u32 {sd}, {sd}, {DBO}')
def db_s_line(A, sd, sh):
    A(f's_lshl_b32 {sd}, {sh}, 7'); A(f's_add_u32 {sd}, {sd}, s19'); A(f's_add_u32 {sd}, {sd}, {DBO + 16384 + 4096}')
MCOPY = 6*16384
TP1, TP2 = 1568, 3200

def sched(A, mains, fill):
    def em(x):
        if isinstance(x, tuple): x = x[0]
        if callable(x): x()
        else: A(x)
    isv = lambda x: isinstance(x, str) and x.startswith('v_')
    for i in range(-1, len(mains)):
        if i >= 0: em(mains[i][1])
        f = fill.get(i, [])
        for x in f:
            if not isv(x): em(x)
        if i + 1 < len(mains) and mains[i+1][0]: mains[i+1][0]()
        for x in f:
            if isv(x): em(x)

def doorbell_wait(A, soff, n, need, fail):
    lp = A.lab('db')
    A('s_mov_b32 s100, 0')
    A(f'{lp}:')
    if n == 1: A(f's_load_dword s52, s[4:5], {soff} glc')
    else: A(f's_load_dwordx2 s[52:53], s[4:5], {soff} glc')
    A('s_add_u32 s100, s100, 1'); A(f's_cmp_gt_u32 s100, {4*SPIN}'); A(f's_cbranch_scc1 {fail}')
    A(f's_waitcnt lgkmcnt({3*n})')
    if n == 1: A(f's_cmp_gt_u32 s52, {need}')
    else: A('s_min_u32 s54, s52, s53'); A(f's_cmp_gt_u32 s54, {need}')
    A(f's_cbranch_scc0 {lp}')

def m_loads(A, w, G, between=((), ())):
    A(f'buffer_load_dwordx4 {v(G,4)}, v5, {WS}, s51 offen offset:{1024*w} sc1')
    for x in between[0]: A(x)
    A(f'buffer_load_dwordx4 {v(G+4,4)}, v5, {WS}, s57 offen offset:{1024*w} sc1')
    for x in between[1]: A(x)
    A(f'buffer_load_dwordx4 {v(G+8,4)}, v5, {WS}, s58 offen offset:{1024*(w&1)} sc1')

def m_offs(A, base=0):
    A(f's_add_u32 s51, s36, {base}'); A(f's_add_u32 s57, s36, {base + 4096}'); A(f's_add_u32 s58, s36, {base + 16384}')

def m_check(G, c):
    o = [f'v_max3_u32 {v(c)}, {v(G)}, {v(G+1)}, {v(G+2)}']
    o += [f'v_max3_u32 {v(c)}, {v(c)}, {v(G+i)}, {v(G+i+1)}' for i in (3, 5)]
    o += [f'v_max3_u32 {v(c)}, {v(c)}, {v(G+i)}, {v(G+i+1)}' for i in (7, 9)]
    o += [f'v_max_u32 {v(c)}, {v(c)}, {v(G+11)}', f'v_cmp_eq_u32 vcc, -1, {v(c)}']
    return o

def m_retry(A, lab, back, w, G, c, zero, fail, late=False):
    lp = A.lab('mr')
    A(f'{lab}:')
    if late: A('s_mov_b32 s97, 0x20000000')
    if P.stat: A('s_add_u32 s90, s90, 1')
    A('s_waitcnt lgkmcnt(0)')
    A(f'{lp}:')
    m_loads(A, w, G)
    A('s_add_u32 s99, s99, 1'); A(f's_cmp_gt_u32 s99, {SPIN}'); A(f's_cbranch_scc1 {fail}')
    A('s_waitcnt vmcnt(0)')
    for x in m_check(G, c): A(x)
    A(f's_cbranch_vccnz {lp}')
    for r in zero: A(f'v_mov_b32 {v(r)}, 0')
    A(f's_branch {back}')

def idx_reg(A, r, t):
    A(f'v_and_b32 {t}, 8, v0'); A(f'v_cmp_eq_u32 vcc, 0, {t}'); A(f'v_mov_b32 {t}, 0xeeee'); A(f'v_mov_b32 {v(r)}, 0x4444'); A(f'v_cndmask_b32 {v(r)}, {t}, {v(r)}, vcc')

def mask_oob(A, reg, cond, t):
    A(cond); A(f'v_mov_b32 {t}, 0x80000000'); A(f'v_cndmask_b32 {reg}, {t}, {reg}, vcc')

def role_c(A, fail):
    TM = 'v120'
    lane_expr = functools.partial(common.lane_expr, tmp=TM)
    WB = 192; ACC = 16; G = 32; MW = 44; VOR = (60, 76); YR = 92; PR = 96; D = 116; T = 121; IDX = 15; DBR = 124
    LM = 0; LD = 10240
    lane_expr(A, 'v2', [(3, 1, 512), (4, 2, 128), (0, 3, 16)])
    A('s_lshl_b32 s24, s20, 14'); A('s_lshl_b32 s25, s21, 12'); A('s_add_u32 s24, s24, s25')
    A(f's_add_u32 s25, s24, {O_BM}')
    for ps in range(20):
        for t in range(4):
            A(f'buffer_load_dwordx4 {u(WB + (t*10 + ps//2)*8 + 4*(ps & 1), 4)}, v2, {WS}, s25 offen offset:{1024*t}')
        A('s_add_u32 s25, s25, 1310720')
        if ps >= 14: A('s_waitcnt vmcnt(56)')
    A(f's_add_u32 s24, s24, {O_VO}')
    lane_expr(A, 'v3', [(0, 8, 16)])
    lane_expr(A, 'v5', [(0, 6, 16)])
    A(f's_lshl_b32 s25, s21, 14'); A(f's_add_u32 s25, s25, {PBLK*16384}')
    A('s_add_u32 s26, s25, 128')
    lane_expr(A, 'v6', [(3, 1, 640), (4, 2, 128), (0, 3, 16)], 's26')
    lane_expr(A, 'v7', [(3, 1, 640), (4, 2, 1280), (0, 3, 16)], 's25')
    lane_expr(A, 'v8', [(2, 3, 16), (1, 1, 256), (0, 1, 8)], LD)
    A('v_add_u32 v122, 640, v8')
    A('s_lshl_b32 s25, s20, 7'); A('s_add_u32 s26, s25, 8192'); A('s_cmp_ge_u32 s20, 64'); A('s_cselect_b32 s25, s26, s25')
    lane_expr(A, 'v9', [(0, 5, 4), (5, 1, MCOPY)], 's25')
    A('v_mov_b32 v10, -1')
    idx_reg(A, IDX, TM)
    A('s_lshl_b32 s27, s20, 12'); A(f's_add_u32 s27, s27, {O_YZ}')
    A('s_lshl_b32 s28, s21, 7'); A(f's_add_u32 s28, s28, {O_MB + MB_FLAGS + F_O*128}')
    lane_expr(A, 'v13', [(0, 3, 4)], 's28')
    db_c_line(A, 's50', 's20')
    A(f's_add_u32 s25, s19, {DBO + 16384 + 4096}'); A(f's_cmp_eq_u32 s20, {P.ringJ}'); A('s_cselect_b32 s25, s25, 0x80000000')
    lane_expr(A, 'v11', [(0, 5, 128)], 's25'); A('v_and_b32 v4, 32, v0'); mask_oob(A, 'v11', 'v_cmp_eq_u32 vcc, 0, v4', TM)
    A('s_mov_b32 s52, 0'); A('v_mov_b32 v4, 0')
    ring_init(A)
    def fo_load(): A(f'buffer_load_dword v14, v13, {WS}, 0 offen sc1')
    def fo_spin(lab, back, need):
        A(f'{lab}:')
        A('s_mov_b32 s100, 0')
        lp = A.lab('fo')
        A(f'{lp}:')
        fo_load()
        A('s_add_u32 s100, s100, 1'); A(f's_cmp_gt_u32 s100, {SPIN}'); A(f's_cbranch_scc1 {fail}')
        A('s_waitcnt vmcnt(0)')
        A(f'v_cmp_ge_u32 vcc, {need}, v14'); A(f's_cbranch_vccnz {lp}')
        if back: A(f's_branch {back}')
    def vo_ld(r, t): return f'buffer_load_dwordx4 {v(r+4*t,4)}, v2, {WS}, s24 offen offset:{1024*t} sc1'
    fo_spin(A.lab('fo0'), None, 0)
    for t in range(4): A(vo_ld(VOR[0], t))
    A('s_add_u32 s24, s24, 1310720')
    A('s_mov_b32 s31, 0'); A('s_mov_b32 s59, 0x20000000')
    tr = Tr(A, 'v1', 'v12', TM); stat_init(A)
    labs = [A.lab('cw') for _ in range(4)]
    for w in range(3):
        A(f's_cmp_eq_u32 s21, {w}'); A(f's_cbranch_scc1 {labs[w]}')
    A(f's_branch {labs[3]}')
    for w in range(4):
        own = [w, w+4, 8 + (w & 1)]
        order = own + [k for k in range(10) if k not in own]
        mreg = [G, G+4, G+8, MW, MW+4, MW+8, MW+12, G, G+4, G+8]
        lp = labs[w]; done = A.lab('cdone'); tails = []
        A(f'{lp}:')
        for par in range(2):
            cur, nxt = VOR[par], VOR[1-par]
            m_offs(A, MCOPY)
            A('s_add_u32 s96, s31, 1'); A('s_min_u32 s29, s96, 62'); A('s_mov_b32 s97, 0')
            A('s_cmp_ge_u32 s31, 62'); A('s_cselect_b32 s24, 0x20000000, s24')
            A('s_mov_b32 s99, 0')
            st = A.lab('cst'); rt = A.lab('crt'); fs = A.lab('cfs'); fb = A.lab('cfb')
            A('v_cmp_ge_u32 vcc, s29, v14'); A(f's_cbranch_vccnz {fs}'); A(f'{fb}:')
            if w == 0: A('s_waitcnt vmcnt(0)')
            A('s_barrier')
            if w == P.ringW: A(f'buffer_store_dword v4, v11, {WS}, 0 offen sc1'); A('v_mov_b32 v4, s96')
            tr.t(0)
            z = [f'v_mov_b32 {v(ACC+i)}, 0' for i in range(16)]
            m_loads(A, w, G, (z[:6], z[6:12]))
            for x in z[12:]: A(x)
            for t in range(4): A(vo_ld(nxt, t))
            fo_load()
            A(f'buffer_store_dwordx4 {v(YR,4)}, v3, {WS}, s59 offen sc1')
            A('s_add_u32 s24, s24, 1310720'); A('s_mov_b32 s59, s27'); A(f's_add_u32 s27, s27, {80*4096}')
            NB = 6
            A(f'{st}:')
            lg = LG(A)
            chk = m_check(G, T)
            mains = []
            for k in range(10):
                for t in range(4):
                    mains.append(((lambda k=k: lg.wait(('m', k))) if (t == 0 and k >= 3) else None,
                                  f'v_smfmac_f32_16x16x64_bf16 {v(ACC+4*t,4)}, {v(mreg[k],4)}, {u(WB+(t*10+order[k])*8,8)}, {v(IDX)}'))
            def wr(k): return lambda: lg.op(f'ds_write_b128 v5, {v(G+4*k,4)} offset:{LM + 1024*own[k]}', 'w')
            def rd(k): return lambda: lg.op(f'ds_read_b128 {v(mreg[k],4)}, v5 offset:{LM + 1024*order[k]}', ('m', k))
            fill = {-1: [f's_waitcnt vmcnt({NB+2})'], 0: [wr(0)], 1: [chk[0]], 2: [f's_waitcnt vmcnt({NB+1})', wr(1)], 3: [chk[1]], 4: [chk[2]],
                    5: [f's_waitcnt vmcnt({NB})'] + ([wr(2)] if w < 2 else []), 6: [chk[3], chk[4]], 7: [chk[5], chk[6]],
                    9: [f's_cbranch_vccnz {rt}', lambda: lg.wait('w'), 's_barrier', rd(3)], 10: [rd(4)], 11: [rd(5), rd(6)], 12: [rd(7)], 13: [rd(8)], 14: [rd(9)]}
            if w == 0: fill[16] = [f'buffer_store_dword v10, v9, {WS}, s39 offen sc1']
            if TRACE_ON(): fill[9] = fill[9] + [lambda: tr.t(1), lambda: tr.val(6, 's99')]
            sched(A, mains, fill)
            tails.append(lambda st=st, rt=rt, fs=fs, fb=fb: (m_retry(A, rt, st, w, G, T, range(ACC, ACC+16), fail), fo_spin(fs, fb, 's29')))
            for pa, (ta, tb) in enumerate(((0, 2), (1, 3))):
                for r in range(4): A(f'v_permlane32_swap_b32 {v(ACC+4*ta+r)}, {v(ACC+4*tb+r)}')
                for r in range(2): A(f'v_pk_add_f32 {v(ACC+4*ta+2*r,2)}, {v(ACC+4*ta+2*r,2)}, {v(ACC+4*tb+2*r,2)}')
                for z in range(2): A(f'v_cvt_pk_bf16_f32 {v(YR+2*pa+z)}, {v(ACC+4*ta+2*z)}, {v(ACC+4*ta+2*z+1)}')
            A(f'v_permlane16_swap_b32 {v(YR)}, {v(YR+2)}'); A(f'v_permlane16_swap_b32 {v(YR+1)}, {v(YR+3)}')
            if par == 1:
                A('s_cmp_eq_u32 s31, 63'); A(f's_cbranch_scc1 {done}')
            tr.t(2)
            if P.db:
                if w == 3: doorbell_wait(A, 's50', 1, 's31', fail)
                A('s_barrier')
            A('s_mov_b32 s99, 0')
            tr.t(8); tr.t(11, True)
            def pround(first, cur=cur):
                for t in range(4): A(f'buffer_load_dwordx4 {v(PR+4*t,4)}, v6, {WS}, s36 offen offset:{1280*t} sc1')
                A(f'buffer_load_dwordx4 {v(PR+16,4)}, v7, {WS}, s36 offen sc1')
                extra = 0
                def ring(): A(f'buffer_store_dword v4, v11, {WS}, s97 offen sc1')
                if first and w == P.ringW and P.ringC == 0: ring(); extra = 1
                if not first:
                    A('s_add_u32 s99, s99, 1'); A(f's_cmp_gt_u32 s99, {SPIN}'); A(f's_cbranch_scc1 {fail}')
                for t in range(5):
                    A(f's_waitcnt vmcnt({4-t+extra})')
                    z = v(YR, 4) if t == 4 else v(cur + 4*t, 4)
                    A(f'v_mfma_f32_16x16x32_bf16 {v(D,4)}, {z}, {v(PR+4*t,4)}, {v(D,4) if t else 0}')
                    if first and w == P.ringW and P.ringC == t + 1: ring(); extra = 1
                    if first and t == 0: tr.t(9)
                    if first and t == 4: tr.t(10)
                    b = PR + 4*t
                    if t == 0: A(f'v_max3_u32 {v(T)}, {v(b)}, {v(b+1)}, {v(b+2)}'); A(f'v_max_u32 {v(T)}, {v(T)}, {v(b+3)}')
                    else: A(f'v_max3_u32 {v(T)}, {v(T)}, {v(b)}, {v(b+1)}'); A(f'v_max3_u32 {v(T)}, {v(T)}, {v(b+2)}, {v(b+3)}')
                A(f'v_cmp_eq_u32 vcc, -1, {v(T)}')
            pr = A.lab('prt'); pb = A.lab('pbk')
            pround(True)
            A(f's_cbranch_vccnz {pr}')
            A(f'{pb}:')
            def ptail(pr=pr, pb=pb, pround=pround):
                A(f'{pr}:'); A('s_mov_b32 s97, 0x20000000'); A('s_add_u32 s91, s91, 1' if P.stat else ''); pround(False); A(f's_cbranch_vccnz {pr}'); A(f's_branch {pb}')
            tails.append(ptail)
            if w == P.ringW and P.ringC == 6: A(f'buffer_store_dword v4, v11, {WS}, s97 offen sc1')
            A(f'ds_write_b128 v3, {v(D,4)} offset:{LD}')
            A('s_waitcnt lgkmcnt(0)'); A('s_barrier')
            if w == P.ringW and P.ringC == 7: A(f'buffer_store_dword v4, v11, {WS}, s97 offen sc1')
            tr.t(3); tr.val(7, 's99')
            if w == 0:
                for k in range(4): A(f'ds_read2st64_b64 {v(PR+4*k,4)}, {"v8" if k & 1 else "v122"} offset0:{4*(k>>1)} offset1:{4*(k>>1)+2}')
                for k in range(4):
                    A(f's_waitcnt lgkmcnt({3-k})')
                    A(f'v_pk_add_f32 {v(PR+4*k,2)}, {v(PR+4*k,2)}, {v(PR+4*k+2,2)}')
                    if k == 1: A(f'v_pk_add_f32 {v(PR,2)}, {v(PR,2)}, {v(PR+4,2)}')
                    if k == 2: A(f'v_pk_add_f32 {v(PR,2)}, {v(PR,2)}, {v(PR+8,2)}')
                A(f'v_pk_add_f32 {v(PR,2)}, {v(PR,2)}, {v(PR+12,2)}')
                A(f'v_cvt_pk_bf16_f32 {v(T)}, {v(PR)}, {v(PR+1)}')
                A(f'v_min_u32 {v(T)}, -2, {v(T)}')
                A(f'buffer_store_dword {v(T)}, v9, {WS}, s37 offen sc1')
            if TRACE_ON(): A('s_barrier')
            tr.t(4); tr.t(5, True)
            tr.flush()
            ring_step(A)
            A('s_add_u32 s31, s31, 1')
        A(f's_branch {lp}')
        A(f'{done}:')
        A(f'buffer_store_dwordx4 {v(YR,4)}, v3, {WS}, s59 offen sc1')
        stat_out(A)
        A('s_endpgm')
        for t in tails: t()

def TRACE_ON(): return common.TRACE

def stat_init(A):
    if P.stat:
        A('s_mov_b32 s90, 0'); A('s_mov_b32 s91, 0'); A('s_mov_b32 s92, 0')
def stat_mark(A):
    if P.stat:
        l = A.lab('sm'); A('s_cmp_lg_u32 s31, 4'); A(f's_cbranch_scc1 {l}'); A('s_memrealtime s[92:93]'); A(f'{l}:')
def stat_out(A):
    if P.stat:
        A('s_memrealtime s[94:95]'); A('s_waitcnt lgkmcnt(0)'); A('s_sub_u32 s92, s94, s92')
        A('s_lshl_b32 s84, s2, 2'); A('s_add_u32 s84, s84, s21'); A('s_lshl_b32 s84, s84, 4'); A(f's_add_u32 s84, s84, {O_TR}')
        A('v_mov_b32 v16, s90'); A('v_mov_b32 v17, s91'); A('v_mov_b32 v18, s92'); A('v_mov_b32 v19, 1'); A('v_mov_b32 v1, 0')
        A(f'buffer_store_dwordx4 v[16:19], v1, {WS}, s84 offen')

def role_s(A, fail):
    WB = 112; AQ = 16; AK = 28; ST = 40; XQ = 56; G = 80; MW = 92; MI = 108; IDX = 15
    STG = [ST, ST+8, XQ, XQ+8, XQ+16]
    LM = 0; LTQ = 10240; LTK = 16640; LKX = 24576; LW = 81920
    head_dma_setup(A, 's21')
    A('s_mul_i32 s87, s20, 384'); A(f's_mul_i32 s86, s21, {16*12288}'); A('s_add_u32 s87, s87, s86')
    A('s_mul_i32 s86, s21, 96')
    lane_expr(A, 'v5', [(5, 1, 16*384), (4, 1, 4*384), (2, 1, 384), (3, 1, 8*384), (0, 2, 8)], 's86')
    A('s_mul_i32 s86, s21, 20480'); A(f's_add_u32 s86, s86, {LW}')
    lane_expr(A, 'v6', [(0, 6, 16)], 's86')
    ring_init(A)
    A('s_mov_b32 s31, 0')
    A('s_mul_i32 s25, s20, 12288'); A(f's_add_u32 s25, s25, {O_KX}')
    A('s_mul_i32 s26, s20, 6144'); A(f's_add_u32 s26, s26, {O_KM}')
    A('s_lshl_b32 s32, s20, 7'); A(f's_add_u32 s33, s32, {O_MB + MB_FLAGS + F_K*128}'); A(f's_add_u32 s32, s32, {O_MB + MB_FLAGS + F_M*128}')
    A('s_mov_b32 s34, 0'); A(f's_mov_b32 s28, {LKX}')
    labs = [A.lab('sw') for _ in range(4)]
    for w in range(3):
        A(f's_cmp_eq_u32 s21, {w}'); A(f's_cbranch_scc1 {labs[w]}')
    A(f's_branch {labs[3]}')
    TM = 'v111'
    LE = functools.partial(common.lane_expr, tmp=TM)
    def kx_dma(i, sb):
        def f():
            if i % 4 == 0:
                A(f's_add_u32 m0, {sb}, {4096*(i//4)}'); A(f's_add_u32 s89, s25, {4096*(i//4)}')
            A(f'buffer_load_dwordx4 v5, {WS}, s89 offen offset:{1024*(i%4)} sc1 lds')
        return f

    for w in range(4):
        A(f'{labs[w]}:')
        own = [w, w+4, 8 + (w & 1)]
        order = own + [k for k in range(10) if k not in own]
        kap = {ks: i for i, ks in enumerate(order)}
        inl = [(1, 1, 0), (1, 2, 0), (1, 1, 1), (1, 2, 1), (0, 0, 2)] + [(0, 2, k) for k in range(5, 10)]
        wreg = {}; n = 0
        for mat in range(2):
            for t in range(3):
                for k in range(10):
                    if (mat, t, k) not in inl: wreg[mat, t, k] = WB + 8*n; n += 1
        dq = head_dma(A, 's[8:11]', 's87', 's21'); dk = head_dma(A, 's[12:15]', 's87', 's21')
        def dma(b, off): (dq if b < 10 else dk)(b % 10, off)
        def consume(b, off):
            mat, k = b // 10, kap[b % 10]
            A(f'v_add_u32 v7, {off}, v5')
            tol = []
            for t in range(3):
                if (mat, t, k) in inl: r = ST + 8*len(tol); tol.append((inl.index((mat, t, k)), r))
                else: r = wreg[mat, t, k]
                for hi in range(2):
                    for jp in range(2):
                        A(f'ds_read_b64_tr_b16 {u(r + 4*hi + 2*jp, 2)}, v7 offset:{(32*hi + 2*jp)*384 + 32*t}')
            if tol: A('s_waitcnt lgkmcnt(0)')
            for i, r in tol:
                A(f'ds_write_b128 v6, {v(r,4)} offset:{2048*i}'); A(f'ds_write_b128 v6, {v(r+4,4)} offset:{2048*i + 1024}')
        staged_load(A, 20, 3, 24576, dma, consume, 6)
        LE(A, 'v5', [(0, 6, 16)])
        LE(A, 'v7', [(0, 4, 8), (4, 1, TP1), (5, 1, TP2)], 384*w)
        LE(A, 'v8', [(4, 2, 64), (2, 2, 8), (0, 1, TP1), (1, 1, TP2)])
        idx_reg(A, IDX, TM)
        if w == 0:
            LE(A, 'v9', [(4, 2, 512), (0, 4, 16)])
            A('s_lshr_b32 s24, s20, 3'); A('s_lshl_b32 s24, s24, 14'); A('s_and_b32 s27, s20, 7'); A('s_mul_i32 s27, s27, 640')
            A('s_add_u32 s24, s24, s27'); A(f's_add_u32 s24, s24, {PBLK*16384}'); A('s_add_u32 s27, s24, 128')
            A('v_and_b32 v14, 8, v0')
            LE(A, 'v10', [(3, 1, 256), (5, 1, 128), (4, 1, 8), (0, 3, 16)], 's27')
            LE(A, 'v12', [(4, 1, 8), (5, 1, 4), (0, 3, 16)], 's24'); mask_oob(A, 'v12', 'v_cmp_eq_u32 vcc, 0, v14', TM)
            LE(A, 'v13', [(0, 6, 16)], 's24'); mask_oob(A, 'v13', 'v_cmp_gt_u32 vcc, 40, v0', TM)
        A(f's_mov_b32 s56, {f2h(CSC)}')
        if w == 1:
            A('v_mov_b32 v9, s32'); mask_oob(A, 'v9', 'v_cmp_eq_u32 vcc, 64, v0', TM)
        if w == 2:
            flag_wait(A, 4, 's33', 0, 's34', fail)
            for i in range(12): kx_dma(i, 's28')()
        if w == 3:
            db_s_line(A, 's50', 's20'); A('s_mov_b64 s[52:53], 0')
        if w in (0, 3):
            A(f's_add_u32 s27, s19, {DBO}'); A(f's_cmp_eq_u32 s20, {P.ringH}'); A('s_cselect_b32 s27, s27, 0x80000000')
            LE(A, 'v3', [(0, 6, 128)], 's27'); A('v_add_u32 v4, 16384, v3')
            A('v_and_b32 v14, 63, v0'); mask_oob(A, 'v4', 'v_cmp_gt_u32 vcc, 16, v14', TM)
        tr = Tr(A, 'v1', 'v2', TM); stat_init(A)
        lp = A.lab('s'); done = A.lab('sdone'); st = A.lab('sst'); rt = A.lab('srt')
        A(f'{lp}:')
        stat_mark(A)
        lg = LG(A)
        def stage(i, z): return lambda: lg.op(f'ds_read_b128 {v(STG[i%5] + 4*z, 4)}, v6 offset:{2048*i + 1024*z}', ('w', i))
        for i in range(5): stage(i, 0)(); stage(i, 1)()
        m_offs(A)
        if w == 0:
            A('v_add_u32 v11, s28, v9')
            A('s_cmp_eq_u32 s31, 63'); A('s_cselect_b32 s55, 0x20000000, s36')
        A('s_mov_b32 s99, 0')
        lg.drain()
        if w == 2:
            A('s_add_u32 s29, s31, 1'); A('s_min_u32 s29, s29, 62')
            flag_wait(A, 4, 's33', 's29', 's34', fail)
        A(f's_add_u32 s25, s25, {32*12288}')
        A('s_cmp_ge_u32 s31, 62'); A('s_cselect_b32 s25, 0x20000000, s25')
        A(f's_xor_b32 s35, s28, {LKX ^ (LKX + 12288)}'); A(f's_add_u32 m0, s35, {3072*w}')
        A(f's_add_u32 s89, s25, {3072*w}')
        if w in (0, 3): A('s_add_u32 s29, s31, 1'); A('v_mov_b32 v14, s29'); A('s_mov_b32 s97, 0')
        if w == 3:
            if P.db:
                nw = A.lab('nw')
                A('s_sub_u32 s29, s31, 1'); A(f's_cbranch_scc1 {nw}')
                doorbell_wait(A, 's50', 1, 's29', fail)
                A(f'{nw}:')
        A('s_barrier')
        tr.t(0); tr.t(11, True)
        z = [f'v_mov_b32 {v(AQ+i)}, 0' for i in range(24)]
        m_loads(A, w, G, (z[:P.ga], z[P.ga:2*P.ga]))
        for x in z[2*P.ga:]: A(x)
        A(f'{st}:')
        mreg = [G, G+4, G+8, MW, MW+4, MW+8, MW+12, G, G+4, G+8]
        seq = [(mat, t, k) for k in range(3) for mat in range(2) for t in range(3)]
        seq += [(0, t, k) for t in range(3) for k in range(3, 10)]
        seq += [(1, t, k) for t in range(3) for k in range(3, 10)]
        mains = []
        for (mat, t, k) in seq:
            def wt(mat=mat, t=t, k=k):
                if (mat, t, k) == (0, 2, 5): lg.wait(('w', 9))
                elif k >= 3: lg.wait(('m', k))
            r = v(STG[inl.index((mat, t, k)) % 5], 8) if (mat, t, k) in inl else u(wreg[mat, t, k], 8)
            mains.append((wt, f'v_smfmac_f32_16x16x64_bf16 {v((AQ, AK)[mat]+4*t,4)}, {v(mreg[k],4)}, {r}, {v(IDX)}'))
        chk = m_check(G, MI)
        def wr(k): return lambda: lg.op(f'ds_write_b128 v5, {v(G+4*k,4)} offset:{LM + 1024*own[k]}', 'mw')
        def rd(k): return lambda: lg.op(f'ds_read_b128 {v(mreg[k],4)}, v5 offset:{LM + 1024*order[k]}', ('m', k))
        def epi(mat, t):
            b = (AQ, AK)[mat] + 4*t
            pre = [f'v_mul_f32 {v(b+r)}, s56, {v(b+r)}' for r in range(4)] if mat == 0 else []
            return pre + [f'v_cvt_pk_bf16_f32 {v(b)}, {v(b)}, {v(b+1)}', f'v_cvt_pk_bf16_f32 {v(b+1)}, {v(b+2)}, {v(b+3)}',
                    lambda: lg.op(f'ds_write_b64 v7, {v(b,2)} offset:{(LTQ, LTK)[mat] + 128*t}', ('t', mat))]
        def xq(t, z): return lambda: lg.op(f'ds_read_b64_tr_b16 {v(XQ+4*t+2*z,2)}, v8 offset:{LTQ + 256*t + 32*z}', ('xq', t))
        KXR = [ST, ST+4, ST+8, ST+12] + mreg[3:10] + [MI]
        def kx(i): return lambda: lg.op(f'ds_read_b128 {v(KXR[i], 4)}, v11 offset:{(i//2)*2048 + (i&1)*256}', ('kx', i))
        fill = {}
        def add(slot, *xs): fill.setdefault(slot, []).extend(xs)
        a1, a2 = P.a1, P.a2
        add(-1, 's_waitcnt vmcnt(2)'); add(0, wr(0)); add(1, chk[0])
        add(a1, 's_waitcnt vmcnt(1)', wr(1)); add(a1+1, chk[1]); add(a1+2, chk[2])
        add(a2, 's_waitcnt vmcnt(0)')
        if w < 2: add(a2, wr(2))
        add(a2+1, chk[3], chk[4]); add(a2+2, chk[5], chk[6])
        add(a2+3, f's_cbranch_vccnz {rt}', lambda: lg.wait('mw'), 's_barrier', rd(3))
        if TRACE_ON():
            add(18, lambda: tr.t(1), lambda: tr.val(6, 's99')); add(-1, lambda: tr.t(8)); add(P.st1, lambda: tr.t(9)); add(P.st2, lambda: tr.t(10))
        for i, k in enumerate(range(4, 10)): add(max(a2 + 4 + i, 17 if k == 9 else 0), rd(k))
        for i in range(10): add(max(18, a2 + 10) + i, stage(5 + i//2, i & 1))
        for i in range(3): add(42 + i, f'buffer_load_dwordx4 v5, {WS}, s89 offen offset:{1024*i} sc1 lds')
        starts = ((0, 0, 27), (0, 1, 34), (0, 2, 41), (1, 0, 48), (1, 1, 55))
        for mat, t, s0 in starts:
            for i, x in enumerate(epi(mat, t)): add(s0 + i, x)
        add(51, lambda: lg.wait(('t', 0)), 's_barrier')
        if w == 0:
            for i, s0 in ((11, 34), (0, 35), (1, 36), (2, 37), (3, 38)): add(s0, kx(i))
            for i, s0 in zip(range(4, 11), (53, 54, 55, 56, 58, 59, 59)): add(s0, kx(i))
            for i, s0 in enumerate((52, 52, 53, 54, 55, 56, 58)): add(s0, xq(i//2, i & 1))
        isv = lambda x: isinstance(x, str) and x.startswith('v_')
        for _, _, s0 in starts:
            have = 3 + sum(len(fill.get(q, [])) for q in (s0-3, s0-2, s0-1)) + len(fill[s0]) - 1
            for q in (s0, s0-2, s0-3, s0-1):
                room = 3 - len(fill.get(q, []))
                k_ = min(room, 8 - have)
                if k_ > 0: add(q, f's_nop {k_-1}'); have += k_
        ring = f'buffer_store_dword v14, v4, {WS}, s97 offen sc1\nbuffer_store_dword v14, v3, {WS}, s97 offen sc1'
        if w == 3 and P.ringS < 60: add(P.ringS, ring)
        sched(A, mains, fill)
        tr.t(2)
        S = AQ
        e2 = epi(1, 2)
        if w != 0:
            for x in e2: x() if callable(x) else A(x)
            if w == 3 and P.ringS == 60: A(ring)
            lg.drain(); A('s_barrier')
            if w == 3 and P.ringS >= 61:
                A.nop(4*(P.ringS - 61)); A(ring)
        else:
            def smx(i):
                d = v(S + 4*(i & 1), 4)
                def f(): lg.wait(('kx', i)); lg.wait(('xq', i//2))
                return (f, f'v_mfma_f32_16x16x32_bf16 {d}, {v(KXR[i],4)}, {v(XQ+4*(i//2),4)}, {d if i >= 2 else 0}')
            XK = KXR[:6]
            def xk(t, z): return lambda: lg.op(f'ds_read_b64_tr_b16 {v(XK[t]+2*z,2)}, v8 offset:{LTK + 256*t + 32*z}', ('xk', t))
            f2 = {0: [xq(3, 1), xq(4, 0)], 1: [xq(4, 1)] + e2[:2], 2: [e2[2]], 3: [xq(5, 0), xq(5, 1)],
                  5: [lambda: lg.wait(('t', 1)), 's_barrier'], 6: [xk(0, 0), xk(0, 1)], 7: [xk(1, 0), xk(1, 1)],
                  8: [xk(2, 0), xk(2, 1)], 9: [xk(3, 0), xk(3, 1)], 10: [xk(4, 0), xk(4, 1)], 11: [xk(5, 0), xk(5, 1)]}
            sched(A, [smx(i) for i in range(12)], f2)
            M = AK; X = AK + 4
            def smm(t):
                return (lambda: lg.wait(('xk', t)), f'v_mfma_f32_16x16x32_bf16 {v(S+8,4)}, {v(XK[t],4)}, {v(XQ+4*t,4)}, {v(S+8,4) if t else 0}')
            dpp = lambda op, d, r, bm: f'{op}_dpp {v(d)}, {v(r)}, {v(r)} row_ror:8 row_mask:0xf bank_mask:{bm}'
            xa = [dpp('v_add_f32', X+r, S+r, '0x3') for r in range(4)]; xb = [dpp('v_add_f32', X+r, S+4+r, '0xc') for r in range(4)]
            f3 = {1: xa[:2], 2: xa[2:], 3: xb[:2], 4: xb[2:],
                  5: [f'v_max3_f32 {v(M)}, {v(X)}, {v(X+1)}, {v(X+2)}', f'v_max_f32 {v(M)}, {v(M)}, {v(X+3)}', dpp('v_max_f32', M, M, '0xf')]}
            sched(A, [smm(t) for t in range(6)], f3)
            tr.t(3)
            A(f'v_permlane32_swap_b32 {v(S+8)}, {v(S+10)}'); A(f'v_permlane32_swap_b32 {v(S+9)}, {v(S+11)}')
            A(f'v_pk_add_f32 {v(S+8,2)}, {v(S+8,2)}, {v(S+10,2)}')
            A(dpp('v_add_f32', X+4, S+8, '0xf')); A(dpp('v_add_f32', X+5, S+9, '0xf'))
            A(f'v_max3_f32 {v(M+1)}, {v(M)}, {v(X+4)}, {v(X+5)}'); A(f'v_max3_f32 {v(M)}, {v(M)}, {v(X+4)}, {v(X+5)}')
            A(f'v_permlane16_swap_b32 {v(M+1)}, {v(M)}')
            A(f'v_max_f32 {v(M+2)}, {v(M)}, {v(M+1)}'); A(f'v_max_f32 {v(M)}, {v(M)}, {v(M+1)}')
            A(f'v_permlane32_swap_b32 {v(M+2)}, {v(M)}')
            A(f'v_max_f32 {v(M)}, {v(M)}, {v(M+2)}')
            for i in (4, 0, 2): A(f'v_pk_add_f32 {v(X+i,2)}, {v(X+i,2)}, {v(M,2)} op_sel_hi:[1,0] neg_lo:[0,1] neg_hi:[0,1]')
            for i in (4, 5, 0, 1, 2, 3): A(f'v_exp_f32 {v(X+i)}, {v(X+i)}')
            A(f'v_pk_fma_f32 {v(M,2)}, {v(X+4,2)}, 0.5, {v(X,2)} op_sel_hi:[1,0,1]')
            A(f'v_pk_add_f32 {v(M,2)}, {v(M,2)}, {v(X+2,2)}')
            A(f'v_add_f32 {v(M)}, {v(M)}, {v(M+1)}')
            A(dpp('v_add_f32', M+1, M, '0xf')); A(dpp('v_add_f32', M+2, M, '0xf'))
            A(f'v_permlane16_swap_b32 {v(M+1)}, {v(M+2)}')
            A(f'v_add_f32 {v(M)}, {v(M+1)}, {v(M+2)}'); A(f'v_add_f32 {v(M+1)}, {v(M+1)}, {v(M+2)}')
            A(f'v_permlane32_swap_b32 {v(M)}, {v(M+1)}')
            A(f'v_add_f32 {v(M)}, {v(M)}, {v(M+1)}')
            A(f'v_rcp_f32 {v(M)}, {v(M)}')
            for i in range(3):
                A(f'v_pk_mul_f32 {v(X+2*i,2)}, {v(X+2*i,2)}, {v(M,2)} op_sel_hi:[1,0] clamp')
                A(f'v_cvt_pk_bf16_f32 {v(S+i)}, {v(X+2*i)}, {v(X+2*i+1)}')
                if i == 1: A(f'buffer_store_dwordx2 {v(S,2)}, v10, {WS}, s55 offen sc1')
            A(f'buffer_store_dword {v(S+2)}, v12, {WS}, s55 offen sc1')
            A(ring.replace('s97', '0'))
            A('s_barrier')
            tr.t(4); tr.t(5, True)
            for i in range(4): A(f'v_mov_b32 {v(MI+i)}, -1')
            A(f'buffer_store_dwordx4 {v(MI,4)}, v13, {WS}, s38 offen sc1')
        if w >= 2: A('s_barrier')
        if w == 1:
            for t in range(6):
                for z in range(2): A(f'ds_read_b64_tr_b16 {v(XQ+4*t+2*z,2)}, v8 offset:{LTK + 256*t + 32*z}')
            A('s_add_u32 s29, s31, 1'); A('v_mov_b32 v10, s29'); A('s_add_u32 s30, s26, 4096')
            A('s_waitcnt lgkmcnt(0)')
            A('s_barrier')
            for t in range(6): A(f'buffer_store_dwordx4 {v(XQ+4*t,4)}, v5, {WS}, {"s26" if t < 4 else "s30"} offen offset:{1024*(t%4)} sc1')
            A(f's_add_u32 s26, s26, {32*6144}')
            A('s_waitcnt vmcnt(0)')
            A(f'buffer_store_dword v10, v9, {WS}, 0 offen sc1')
        A(f's_xor_b32 s28, s28, {LKX ^ (LKX + 12288)}')
        ring_step(A)
        tr.t(7); tr.flush()
        A('s_add_u32 s31, s31, 1'); A('s_cmp_lt_u32 s31, 64'); A(f's_cbranch_scc1 {lp}')
        A(f'{done}:')
        stat_out(A)
        A('s_endpgm')
        m_retry(A, rt, st, w, G, MI, range(AQ, AQ+24), fail, True)
```

```python
from common import *

def staged_load(A, nblk, nbuf, blkbytes, dma, consume, ndma):
    depth = nbuf - 1
    for b in range(min(depth, nblk)): dma(b, (b % nbuf)*blkbytes)
    for b in range(nblk):
        inflight = min(nblk, b + depth) - b - 1
        A(f's_waitcnt vmcnt({inflight*ndma})')
        A('s_barrier')
        if b + depth < nblk: dma(b + depth, ((b + depth) % nbuf)*blkbytes)
        consume(b, (b % nbuf)*blkbytes)
        A('s_waitcnt lgkmcnt(0)')
    A('s_barrier')

def head_dma_setup(A, swave):
    for i in range(3):
        A(f'v_and_b32 v254, 63, v0')
        A(f'v_add_u32 v254, {64*i}, v254')
        A(f'v_mul_u32_u24 v253, 2731, v254')
        A(f'v_lshrrev_b32 v253, 16, v253')
        A(f'v_mul_u32_u24 v252, 24, v253')
        A(f'v_sub_u32 v254, v254, v252')
        A(f'v_mul_u32_u24 v253, 12288, v253')
        A(f'v_lshl_add_u32 {v(2+i)}, v254, 4, v253')
    A(f's_mul_i32 s88, {swave}, 6144')

def head_dma(A, srdw, sbase, swave):
    def dma(blk, off):
        for half in range(2):
            A(f's_add_u32 s89, {sbase}, {(64*blk + 8*half)*12288}')
            for i in range(3):
                A(f's_add_u32 m0, s88, {off + half*3072 + i*1024}')
                A(f'buffer_load_dwordx4 {v(2+i)}, {srdw}, s89 offen lds')
    return dma

def load_proj_weights(A, srdw, shead, swave, wbase):
    head_dma_setup(A, swave)
    A(f's_mul_i32 s87, {shead}, 384')
    A(f's_mul_i32 s86, {swave}, {16*12288}')
    A('s_add_u32 s87, s87, s86')
    A(f's_mul_i32 s86, {swave}, 96')
    lane_expr(A, 'v5', [(4, 2, 8*384), (2, 2, 384), (0, 2, 16)], 's86')
    lane_expr(A, 'v6', [(4, 2, 8*384), (2, 2, 384), (0, 2, 8)], 's86')
    def consume(blk, off):
        A(f'v_add_u32 v7, {off}, v5'); A(f'v_add_u32 v8, {off}, v6')
        for k2 in range(2):
            ks = 2*blk + k2
            for t in range(3):
                for z in range(2):
                    o = (32*k2 + 4*z)*384 + (0, 8, 64)[t]
                    A(f'ds_read_b64_tr_b16 {u(wbase + (t*20+ks)*4 + 2*z, 2)}, {"v8" if t == 2 else "v7"} offset:{o}')
    staged_load(A, 10, 6, 24576, head_dma(A, srdw, 's87', swave), consume, 6)

HB = 40960

def h_dma(A, sseg_off, ldsoff_s):
    out = []
    for i in range(10):
        def f(i=i):
            if i % 4 == 0:
                A(f's_add_u32 m0, {ldsoff_s}, {4096*(i//4)}')
                A(f's_add_u32 s89, {sseg_off}, {4096*(i//4)}')
            A(f'buffer_load_dwordx4 v9, {WS}, s89 offen offset:{1024*(i%4)} lds')
        out.append(f)
    return out

def proj_mfmas(A, wbase, acc, bop, vaddr, nxt_addr):
    groups = []
    for ks in range(20):
        g = []
        k2 = ks + 2
        ad, kk = (vaddr, k2) if k2 < 20 else (nxt_addr, k2 - 20)
        sl = bop + 8*(k2 % 4)
        cur = bop + 8*(ks % 4)
        if ad is not None:
            g.append(f'ds_read_b128 {v(sl,4)}, {ad} offset:{kk*2048}')
            g.append(f'ds_read_b128 {v(sl+4,4)}, {ad} offset:{kk*2048 + 256}')
            g.append('s_waitcnt lgkmcnt(4)')
        else:
            g.append(f's_waitcnt lgkmcnt({2 if ks == 18 else 0})')
        for T in range(2):
            for t in range(3):
                d = v(acc + (T*3+t)*4, 4)
                g.append(f'v_mfma_f32_16x16x32_bf16 {d}, {u(wbase + (t*20+ks)*4, 4)}, {v(cur+4*T,4)}, {d if ks else 0}')
        groups.append(g)
    return groups

def proj_pack(acc, pk):
    o = []
    for T in range(2):
        for t in range(2):
            b = acc + (T*3+t)*4
            o.append(f'v_cvt_pk_bf16_f32 {v(pk+4*T+2*t)}, {v(b)}, {v(b+1)}')
            o.append(f'v_cvt_pk_bf16_f32 {v(pk+4*T+2*t+1)}, {v(b+2)}, {v(b+3)}')
    for T in range(2):
        b = acc + (T*3+2)*4
        o.append(f'v_cvt_pk_bf16_f32 {v(pk+8+2*T)}, {v(b)}, {v(b+1)}')
        o.append(f'v_cvt_pk_bf16_f32 {v(pk+8+2*T+1)}, {v(b+2)}, {v(b+3)}')
    o.append('s_nop 0')
    o.append(f'v_permlane16_swap_b32 {v(pk+8)}, {v(pk+10)}')
    o.append(f'v_permlane16_swap_b32 {v(pk+9)}, {v(pk+11)}')
    return o

def proj_out_addr(A, dA, dB, swave):
    A(f's_mul_i32 s86, {swave}, {6*512}')
    lane_expr(A, dA, [(4, 2, 512), (0, 4, 16)], 's86')
    A(f's_add_u32 s86, s86, {4*512}')
    lane_expr(A, dB, [(5, 1, 512), (4, 1, 256), (0, 4, 16)], 's86')

def role_proj(A, fail):
    WB = 256
    load_proj_weights(A, 's[8:11]', 's20', 's21', WB)
    ACC = (64, 88); BOP = 112; PK = 144
    A('s_mul_i32 s24, s21, 10240')
    lane_expr(A, 'v9', [(0, 6, 16)], 's24')
    lane_expr(A, 'v10', [(4, 2, 512), (0, 4, 16)])
    proj_out_addr(A, 'v14', 'v15', 's21')
    A('s_mul_i32 s25, s20, 12288'); A('s_add_u32 s25, s25, s22')
    lane0_off(A, 'v16', 's23')
    A('s_mov_b32 s26, 0'); A(f's_mov_b32 s27, {HB}'); A(f's_mov_b32 s28, {2*HB}')
    A(f's_mov_b32 s29, {O_H}')
    for k in range(2):
        A(f's_add_u32 s30, s24, {k*HB}')
        for f in h_dma(A, 's29', 's30'): f()
        A(f's_add_u32 s29, s29, {HB}')
    A('s_waitcnt vmcnt(10)'); A('s_barrier')
    for k in range(2):
        A(f'ds_read_b128 {v(BOP+8*k,4)}, v10 offset:{k*2048}')
        A(f'ds_read_b128 {v(BOP+8*k+4,4)}, v10 offset:{k*2048+256}')
    A('v_mov_b32 v11, v10')
    A('s_mov_b32 s31, 0')
    tr = Tr(A, 'v1', 'v2', 'v255')
    lp = A.lab('proj')
    A(f'{lp}:')
    for par in range(2):
        acc, prev = ACC[par], ACC[1-par]
        A('v_add_u32 v12, s27, v10')
        groups = proj_mfmas(A, WB, acc, BOP, 'v11', 'v12')
        skip = A.lab('pskip')
        pack = proj_pack(prev, PK)
        for ks, g in enumerate(groups):
            fill = []
            if 2 <= ks <= 6:
                fill = pack[(ks-2)*3:(ks-1)*3]
            pre, mf = g[:-6], g[-6:]
            for x in pre: A(x)
            interleave(A, mf, fill, start=1)
            if ks == 7:
                if par == 0:
                    A('s_cmp_eq_u32 s31, 0'); A(f's_cbranch_scc1 {skip}')
                A(f'buffer_store_dwordx4 {v(PK,4)}, v14, {WS}, s25 offen sc1')
                A(f'buffer_store_dwordx4 {v(PK+4,4)}, v14, {WS}, s25 offen offset:256 sc1')
                A(f'buffer_store_dwordx4 {v(PK+8,4)}, v15, {WS}, s25 offen sc1')
                A(f's_add_u32 s25, s25, {32*12288}')
                if par == 0: A(f'{skip}:')
            if ks == 15:
                tr.t(0)
                A('s_waitcnt vmcnt(0)')
                A('s_barrier')
                tr.t(1); tr.t(5, True); tr.flush()
                A('v_mov_b32 v17, s31')
                A(f'buffer_store_dword v17, v16, {WS}, 0 offen sc1')
                A('s_add_u32 s30, s24, s28')
                dm = h_dma(A, 's29', 's30')
            if ks >= 15:
                nd = A.lab('nd')
                A('s_cmp_ge_u32 s31, 62'); A(f's_cbranch_scc1 {nd}')
                for f in dm[(ks-15)*2:(ks-14)*2]: f()
                A(f'{nd}:')
        A(f's_add_u32 s29, s29, {HB}')
        A('v_mov_b32 v11, v12')
        A('s_mov_b32 s30, s26'); A('s_mov_b32 s26, s27'); A('s_mov_b32 s27, s28'); A('s_mov_b32 s28, s30')
        A('s_add_u32 s31, s31, 1')
    A('s_cmp_lt_u32 s31, 64'); A(f's_cbranch_scc1 {lp}')
    for x in proj_pack(ACC[1], PK): A(x)
    A(f'buffer_store_dwordx4 {v(PK,4)}, v14, {WS}, s25 offen sc1')
    A(f'buffer_store_dwordx4 {v(PK+4,4)}, v14, {WS}, s25 offen offset:256 sc1')
    A(f'buffer_store_dwordx4 {v(PK+8,4)}, v15, {WS}, s25 offen sc1')
    A('s_waitcnt vmcnt(0) lgkmcnt(0)'); A('s_barrier')
    A('v_mov_b32 v17, 64')
    A(f'buffer_store_dword v17, v16, {WS}, 0 offen sc1')
    A('s_endpgm')

def load_wo(A, shead, swave):
    A(f's_mul_i32 s88, {swave}, 10240')
    lane_expr(A, 'v2', [(0, 6, 16)], 's88')
    A(f's_mul_i32 s87, {shead}, 245760')
    A(f's_mul_i32 s86, {swave}, 320')
    lane_expr(A, 'v5', [(5, 1, 8*1280), (2, 2, 1280), (4, 1, 32), (0, 2, 8)], 's86')
    def dma(blk, off):
        for i in range(10):
            if i % 4 == 0:
                A(f's_add_u32 m0, s88, {off + 4096*(i//4)}')
                A(f's_add_u32 s89, s87, {blk*40960 + 4096*(i//4)}')
            A(f'buffer_load_dwordx4 v2, s[8:11], s89 offen offset:{1024*(i%4)} lds')
    def consume(blk, off):
        A(f'v_add_u32 v7, {off}, v5')
        for k2 in range(2):
            ks = 2*blk + k2
            for T in range(5):
                for z in range(2):
                    A(f'ds_read_b64_tr_b16 {a((T*12+ks)*4 + 2*z, 2)}, v7 offset:{(16*k2 + 4*z)*1280 + 64*T}')
            if k2 == 0: A('s_waitcnt lgkmcnt(4)')
    staged_load(A, 6, 4, 40960, dma, consume, 10)

def role_wo(A, mode, fail):
    load_wo(A, 's20', 's21')
    AS = (64, 112); ACC = (160, 176); PK = (192, 200)
    vo = mode == 'vo'
    if vo:
        lane_expr(A, 'v10', [(0, 2, 16), (2, 1, 128), (3, 1, 64), (4, 1, 256), (5, 1, 512)])
        A('s_mul_i32 s24, s20, 12288'); A(f's_add_u32 s24, s24, {O_VX}')
        A('s_lshl_b32 s25, s20, 9'); A(f's_add_u32 s25, s25, {O_VO}')
        nseg, src, astep, kstride = 64, WS, 32*12288, 1024
        A('s_lshl_b32 s23, s20, 7'); A(f's_add_u32 s32, s23, {O_MB + MB_FLAGS + F_V*128}')
        A('s_lshr_b32 s23, s20, 3'); A('s_lshl_b32 s23, s23, 7'); A('s_and_b32 s26, s20, 7'); A('s_lshl_b32 s26, s26, 2'); A('s_add_u32 s23, s23, s26')
        A(f's_add_u32 s23, s23, {O_MB + MB_FLAGS + F_O*128}')
        lane0_off(A, 'v16', 's23')
        A('s_mov_b32 s33, 0')
    else:
        lane_expr(A, 'v10', [(0, 1, 12288), (1, 1, 8*12288), (2, 1, 4*12288), (3, 1, 2*12288), (4, 1, 16*12288), (5, 1, 16)])
        A('s_mul_i32 s24, s20, 384'); A(f's_mul_i32 s26, s22, {32*12288}'); A('s_add_u32 s24, s24, s26')
        A('s_lshl_b32 s25, s20, 9'); A('s_mul_i32 s26, s22, 1310720'); A('s_add_u32 s25, s25, s26'); A(f's_add_u32 s25, s25, {O_BM}')
        nseg, src, astep, kstride = 4, 's[12:15]', 32*12288, 32
    fl = ' sc1' if vo else ''
    A(f's_mul_i32 s26, s21, {20*16384}')
    lane_expr(A, 'v11', [(3, 2, 16384), (5, 1, 128), (0, 3, 16)], 's26')
    def aload(setb, ks):
        o = ks*kstride
        def f():
            if o >= 4096:
                if o % 4096 == 0: A(f's_add_u32 s27, s24, {o}')
                A(f'buffer_load_dwordx4 {v(setb+4*ks,4)}, v10, {src}, s27 offen offset:{o % 4096}{fl}')
            else:
                A(f'buffer_load_dwordx4 {v(setb+4*ks,4)}, v10, {src}, s24 offen offset:{o}{fl}')
        return f
    def epi(ti, sreg):
        acc, pk = ACC[ti & 1], PK[ti & 1]
        o = [f'v_cvt_pk_bf16_f32 {v(pk+i)}, {v(acc+2*i)}, {v(acc+2*i+1)}' for i in range(4)]
        o.append(f'buffer_store_dwordx4 {v(pk,4)}, v11, {WS}, {sreg} offen{fl}')
        o += [f'v_cvt_pk_bf16_f32 {v(pk+i)}, {v(acc+2*i)}, {v(acc+2*i+1)}' for i in range(4, 8)]
        o.append(f'buffer_store_dwordx4 {v(pk+4,4)}, v11, {WS}, {sreg} offen offset:256{fl}')
        return o
    if vo: flag_wait(A, 4, 's32', 0, 's33', fail)
    for ks in range(12): aload(AS[0], ks)()
    A(f's_add_u32 s24, s24, {astep}')
    A('s_mov_b32 s31, 0')
    A('s_mov_b32 s28, 0x20000000')
    A('s_waitcnt vmcnt(0)')
    tr = Tr(A, 'v1', 'v2', 'v255')
    lp = A.lab('wo')
    A(f'{lp}:')
    for par in range(2):
        cur, nxt = AS[par], AS[1-par]
        if vo: tr.t(0)
        A('s_waitcnt vmcnt(6)')
        if vo:
            A('s_barrier')
            tr.t(1); tr.t(5, True); tr.flush()
            A('s_sub_u32 s26, s31, 1'); A('s_max_i32 s26, s26, 0')
            A('v_mov_b32 v17, s26')
            A(f'buffer_store_dword v17, v16, {WS}, 0 offen sc1')
            A('s_add_u32 s26, s31, 1'); A('s_min_u32 s26, s26, 63')
            flag_wait(A, 4, 's32', 's26', 's33', fail)
        A(f's_cmp_ge_u32 s31, {nseg-1}'); A('s_cselect_b32 s24, 0x20000000, s24')
        for T in range(5):
            ti = par*5 + T
            d = v(ACC[ti & 1], 16)
            mf = [f'v_mfma_f32_32x32x16_bf16 {d}, {v(cur+4*ks,4)}, {a((T*12+ks)*4,4)}, {d if ks else 0}' for ks in range(12)]
            f1 = [aload(nxt, 4*T + i) for i in range(4)] if T < 3 else ['s_nop 0']*4
            f1 += ['s_nop 0', 's_nop 0']
            interleave(A, mf[:6], f1)
            interleave(A, mf[6:], epi(ti - 1, 's28'), per=2)
            A(f's_add_u32 s28, s25, {T*65536}')
        A(f's_add_u32 s24, s24, {astep}')
        A('s_add_u32 s25, s25, 1310720')
        A('s_add_u32 s31, s31, 1')
    A(f's_cmp_lt_u32 s31, {nseg}'); A(f's_cbranch_scc1 {lp}')
    for x in epi(9, 's28'): A(x)
    if vo:
        A('s_waitcnt vmcnt(0)'); A('s_barrier')
        A('v_mov_b32 v17, 64')
        A(f'buffer_store_dword v17, v16, {WS}, 0 offen sc1')
    A('s_endpgm')
```

```python
from common import *
from workers import staged_load, load_proj_weights, proj_pack, proj_out_addr, HB
from rec import f2h, CSC, NEG, LG
import common

class Stream:
    def __init__(self, A): self.A = A; self.mains = []; self.mem = {}; self.val = {}
    def main(self, text, wait=None): self.mains.append((wait, text)); return len(self.mains) - 1
    def m(self, slot, *xs): self.mem.setdefault(slot, []).extend(xs)
    def spread_v(self, slot, xs, per=1):
        xs = list(xs)
        while xs:
            room = per - len(self.val.get(slot, []))
            for _ in range(max(room, 0)):
                if xs: self.val.setdefault(slot, []).append(xs.pop(0))
            slot += 1
        return slot
    def emit(self):
        A = self.A
        def em(x):
            if callable(x): x()
            else: A(x)
        n = len(self.mains)
        last = max([n - 1] + list(self.mem) + list(self.val))
        if self.mains[0][0]: self.mains[0][0]()
        for i in range(last + 1):
            if i < n: em(self.mains[i][1])
            for x in self.mem.get(i, []): em(x)
            if i + 1 < n and self.mains[i+1][0]: self.mains[i+1][0]()
            for x in self.val.get(i, []): em(x)

def add_proj(S, lg, WB, acc, bop, va, vn, insert=None):
    first = []
    for ks in range(20):
        for (wt, t) in (insert or {}).get(ks, []): S.main(t, wt)
        cur = bop + 8*(ks % 4)
        for T in range(2):
            for t in range(3):
                d = v(acc + (T*3+t)*4, 4)
                wt = (lambda ks=ks: lg.wait(('h', ks))) if (T == 0 and t == 0) else None
                i = S.main(f'v_mfma_f32_16x16x32_bf16 {d}, {u(WB + (t*20+ks)*4, 4)}, {v(cur+4*T,4)}, {d if ks else 0}', wt)
                if T == 0 and t == 0: first.append(i)
        k2 = ks + 2
        ad, kk = (va, k2) if k2 < 20 else (vn, k2 - 20)
        sl = bop + 8*(k2 % 4)
        for T in range(2):
            S.m(first[ks] + T, lambda ad=ad, kk=kk, sl=sl, T=T, k2=k2: lg.op(f'ds_read_b128 {v(sl+4*T,4)}, {ad} offset:{kk*2048 + 256*T}', ('h', k2 if k2 < 20 else ('n', k2 - 20))))
    return first

def lg_next(lg):
    lg.q = [('h', t[1][1]) if (isinstance(t, tuple) and t[0] == 'h' and isinstance(t[1], tuple)) else t for t in lg.q]

def dma_fill(A, S, slots, sg, sl):
    for i, s0 in enumerate(slots):
        if i % 4 == 0: S.m(s0 - 1, f's_add_u32 m0, {sl}, {4096*(i//4)}', f's_add_u32 s89, {sg}, {4096*(i//4)}')
        S.m(s0, f'buffer_load_dwordx4 v9, {WS}, s89 offen offset:{1024*(i%4)} lds')

def h_first(A, k, sw):
    A(f's_add_u32 s30, {sw}, {k*HB}')
    for i in range(10):
        if i % 4 == 0:
            A(f's_add_u32 m0, s30, {4096*(i//4)}'); A(f's_add_u32 s89, s29, {4096*(i//4)}')
        A(f'buffer_load_dwordx4 v9, {WS}, s89 offen offset:{1024*(i%4)} lds')
    A(f's_add_u32 s29, s29, {HB}')

def role_proj(A, fail):
    WB = 256
    load_proj_weights(A, 's[8:11]', 's20', 's21', WB)
    ACC = (64, 88); BOP = 112; PK = 144
    A('s_mul_i32 s24, s21, 10240')
    lane_expr(A, 'v9', [(0, 6, 16)], 's24')
    lane_expr(A, 'v10', [(4, 2, 512), (0, 4, 16)])
    proj_out_addr(A, 'v14', 'v15', 's21')
    A('s_mul_i32 s25, s20, 12288'); A('s_add_u32 s25, s25, s22')
    A('s_mov_b32 s34, 0x20000000')
    lane0_off(A, 'v16', 's23')
    for k in range(4): A(f's_mov_b32 s{40+k}, {k*HB}')
    A(f's_mov_b32 s29, {O_H}')
    for k in range(2): h_first(A, k, 's24')
    A('s_waitcnt vmcnt(10)'); A('s_barrier')
    lg = LG(A)
    for k in range(2):
        for T in range(2): lg.op(f'ds_read_b128 {v(BOP+8*k+4*T,4)}, v10 offset:{k*2048+256*T}', ('h', k))
    A('v_mov_b32 v11, v10')
    A('s_mov_b32 s31, 0')
    tr = Tr(A, 'v1', 'v2', 'v255')
    lp = A.lab('proj')
    A(f'{lp}:')
    for par in range(2):
        va, vn = ('v11', 'v12') if par == 0 else ('v12', 'v11')
        S = Stream(A)
        f = add_proj(S, lg, WB, ACC[par], BOP, va, vn)
        pack = [x for x in proj_pack(ACC[1-par], PK) if not x.startswith('s_nop')]
        e = S.spread_v(8, pack[:12]); e = S.spread_v(e + 1, pack[12:])
        S.spread_v(f[8] + 3, [f'v_add_u32 {vn}, s41, v10', 'v_mov_b32 v17, s31'])
        S.m(f[4] + 2, f'buffer_store_dwordx4 {v(PK,4)}, v14, {WS}, s34 offen sc1')
        S.m(f[4] + 4, f'buffer_store_dwordx4 {v(PK+4,4)}, v14, {WS}, s34 offen offset:256 sc1')
        S.m(f[5] + 2, f'buffer_store_dwordx4 {v(PK+8,4)}, v15, {WS}, s34 offen sc1')
        S.m(f[5] + 3, 's_mov_b32 s34, s25', f's_add_u32 s25, s25, {32*12288}')
        S.m(f[5] + 4, 's_cmp_ge_u32 s31, 62', 's_cselect_b32 s29, 0x20000000, s29', 's_add_u32 s30, s24, s42')
        dma_fill(A, S, [f[6+i] + 3 for i in range(10)], 's29', 's30')
        S.m(f[17] + 2, lambda: tr.t(0), 's_waitcnt vmcnt(10)', 's_barrier', lambda: (tr.t(1), tr.t(5, True)))
        S.m(f[17] + 3, f'buffer_store_dword v17, v16, {WS}, 0 offen sc1')
        S.m(f[18] + 2, f's_add_u32 s29, s29, {HB}', 's_mov_b32 s30, s40', 's_mov_b32 s40, s41')
        S.m(f[18] + 3, 's_mov_b32 s41, s42', 's_mov_b32 s42, s43', 's_mov_b32 s43, s30')
        S.m(f[19] + 2, 's_add_u32 s31, s31, 1', 's_cmp_lt_u32 s31, 64')
        S.emit(); lg_next(lg)
        if common.TRACE: tr.flush(); A('s_cmp_lt_u32 s31, 64')
    A(f's_cbranch_scc1 {lp}')
    for x in proj_pack(ACC[1], PK): A(x)
    A(f'buffer_store_dwordx4 {v(PK,4)}, v14, {WS}, s34 offen sc1')
    A(f'buffer_store_dwordx4 {v(PK+4,4)}, v14, {WS}, s34 offen offset:256 sc1')
    A(f'buffer_store_dwordx4 {v(PK+8,4)}, v15, {WS}, s34 offen sc1')
    A('s_waitcnt vmcnt(0) lgkmcnt(0)'); A('s_barrier')
    A('v_mov_b32 v17, 64')
    A(f'buffer_store_dword v17, v16, {WS}, 0 offen sc1')
    A('s_endpgm')

def softmax_x(S, t0):
    o = [f'v_permlane32_swap_b32 {v(S+8)}, {v(S+10)}', f'v_permlane32_swap_b32 {v(S+9)}, {v(S+11)}']
    o += [f'v_mul_f32 {v(S+i)}, s56, {v(S+i)}' for i in range(8)]
    o += [f'v_add_f32 {v(S+8)}, {v(S+8)}, {v(S+10)}', f'v_add_f32 {v(S+9)}, {v(S+9)}, {v(S+11)}']
    o += [f'v_cndmask_b32 {v(S+p)}, v23, {v(S+p)}, s[{60+2*p+COFF}:{61+2*p+COFF}]' for p in range(8)]
    o += [f'v_mul_f32 {v(S+i)}, s56, {v(S+i)}' for i in (8, 9)]
    m = t0
    o += [f'v_max3_f32 {v(m)}, {v(S)}, {v(S+1)}, {v(S+2)}'] + [f'v_max3_f32 {v(m)}, {v(m)}, {v(S+i)}, {v(S+i+1)}' for i in (3, 5, 7)]
    def red(op):
        return [f'v_permlane16_swap_b32 {v(m+1)}, {v(m)}', f'{op} {v(m+2)}, {v(m)}, {v(m+1)}', f'{op} {v(m)}, {v(m)}, {v(m+1)}',
                f'v_permlane32_swap_b32 {v(m+2)}, {v(m)}', f'{op} {v(m)}, {v(m)}, {v(m+2)}']
    o += [f'v_max_f32 {v(m+1)}, {v(m)}, {v(S+9)}', f'v_max_f32 {v(m)}, {v(m)}, {v(S+9)}'] + red('v_max_f32')
    o += [f'v_sub_f32 {v(S+i)}, {v(S+i)}, {v(m)}' for i in range(10)]
    o += [f'v_exp_f32 {v(S+i)}, {v(S+i)}' for i in range(10)]
    o += [f'v_add_f32 {v(m)}, {v(S)}, {v(S+1)}'] + [f'v_add_f32 {v(m)}, {v(m)}, {v(S+i)}' for i in range(2, 9)]
    o += [f'v_add_f32 {v(m+1)}, {v(m)}, {v(S+9)}', f'v_add_f32 {v(m)}, {v(m)}, {v(S+9)}'] + red('v_add_f32')
    o += [f'v_rcp_f32 {v(m)}, {v(m)}']
    o += [f'v_mul_f32 {v(S+i)}, {v(S+i)}, {v(m)}' for i in range(10)]
    o += [f'v_cvt_pk_bf16_f32 {v(t0+4+i)}, {v(S+2*i)}, {v(S+2*i+1)}' for i in range(5)]
    return o
COFF = -20

def role_wq(A, fail):
    WB = 256
    load_proj_weights(A, 's[8:11]', 's20', 's21', WB)
    ACC = (64, 88); BOP = 112; PK = 144; KXR = 160; KMR = 208; QR = 232; SC = 28; T0 = 40; QB = 3*HB
    A('s_mul_i32 s24, s21, 10240')
    lane_expr(A, 'v9', [(0, 6, 16)], 's24')
    lane_expr(A, 'v10', [(4, 2, 512), (0, 4, 16)])
    proj_out_addr(A, 'v14', 'v15', 's21')
    A(f'v_add_u32 v14, {QB}, v14'); A(f'v_add_u32 v15, {QB}, v15')
    lane_expr(A, 'v16', [(4, 2, 512), (2, 2, 128), (0, 2, 16)])
    lane_expr(A, 'v17', [(0, 6, 16)])
    lane_expr(A, 'v18', [(4, 2, 512), (0, 4, 16), (6, 1, 256)], QB)
    lane_expr(A, 'v19', [(4, 2, 512), (0, 4, 16), (6, 1, 256)], 512)
    lane_expr(A, 'v20', [(4, 1, 8), (5, 1, 4), (0, 4, 16), (6, 1, 256)])
    lane_expr(A, 'v21', [(0, 4, 1), (6, 1, 16)]); lane_expr(A, 'v22', [(4, 2, 8)])
    A('v_sub_u32 v21, v21, v22')
    for p in range(8): A(f'v_cmp_le_i32 s[{40+2*p}:{41+2*p}], {p}, v21')
    A(f'v_mov_b32 v23, {f2h(NEG)}'); A(f's_mov_b32 s56, {f2h(CSC)}')
    A('s_mul_i32 s12, s20, 12288'); A(f's_add_u32 s12, s12, {O_KX}')
    A('s_mul_i32 s13, s20, 6144'); A(f's_add_u32 s13, s13, {O_KM}')
    A('s_mul_i32 s14, s20, 2560'); A(f's_add_u32 s14, s14, {O_PX}')
    for r in (25, 26, 27): A(f's_mov_b32 s{r}, 0x20000000')
    A('s_lshl_b32 s32, s20, 7'); A(f's_add_u32 s33, s32, {O_MB + MB_FLAGS + F_K*128}'); A(f's_add_u32 s32, s32, {O_MB + MB_FLAGS + F_M*128}')
    A('s_mov_b32 s34, 0'); A('s_mov_b32 s35, 0')
    for k in range(3): A(f's_mov_b32 s{36+k}, {k*HB}')
    A(f's_mov_b32 s29, {O_H}')
    for k in range(2): h_first(A, k, 's24')
    A('s_waitcnt vmcnt(10)'); A('s_barrier')
    for k in range(2):
        for T in range(2): A(f'ds_read_b128 {v(BOP+8*k+4*T,4)}, v10 offset:{k*2048+256*T}')
    A('v_mov_b32 v11, v10')
    A('s_mov_b32 s31, 0')
    tr = Tr(A, 'v1', 'v2', 'v255')
    lo = A.lab('wqo')
    A('s_cmp_ge_u32 s21, 2'); A(f's_cbranch_scc1 {lo}')
    def waits(last=False):
        if not last: flag_wait(A, 4, 's33', 's31', 's34', fail)
        nw = A.lab('nw')
        A('s_sub_u32 s15, s31, 1'); A(f's_cbranch_scc1 {nw}')
        flag_wait(A, 4, 's32', 's15', 's35', fail)
        A(f'{nw}:')
    kxl = [f'buffer_load_dwordx4 {v(KXR+8*ks+4*t,4)}, v16, {WS}, {("s12", "s57", "s58")[ks//2]} offen offset:{(ks%2)*2048 + 64*t} sc1' for ks in range(6) for t in range(2)]
    kml = [f'buffer_load_dwordx4 {v(KMR+4*ks,4)}, v17, {WS}, {"s26" if ks < 4 else "s59"} offen offset:{(ks%4)*1024} sc1' for ks in range(6)]
    koffs = ['s_add_u32 s57, s12, 4096', 's_add_u32 s58, s12, 8192', 's_add_u32 s59, s26, 4096']
    def qwrites(lg, qb):
        return [lambda: lg.op(f'ds_write_b128 v14, {v(PK,4)} offset:{qb}', 'qw'), lambda: lg.op(f'ds_write_b128 v14, {v(PK+4,4)} offset:{qb+256}', 'qw'),
                lambda: lg.op(f'ds_write_b128 v15, {v(PK+8,4)} offset:{qb}', 'qw')]
    def smf(ks):
        return [f'v_mfma_f32_16x16x32_bf16 {v(SC+4*t,4)}, {v(src,4)}, {v(QR+4*ks,4)}, {v(SC+4*t,4) if ks else 0}' for t, src in enumerate((KXR+8*ks, KXR+8*ks+4, KMR+4*ks))]
    pst = [f'buffer_store_dwordx4 {v(T0+4,4)}, v19, {WS}, s27 offen sc1', f'buffer_store_dword {v(T0+8)}, v20, {WS}, s27 offen sc1']
    for sc in (True, False):
        if not sc: A(f'{lo}:')
        lg = LG(A); lg.q = [('h', 0), ('h', 0), ('h', 1), ('h', 1)]
        lp = A.lab('wq')
        A(f'{lp}:')
        for par in range(2):
            va, vn = ('v11', 'v12') if par == 0 else ('v12', 'v11')
            qb = 12288*par
            if sc: waits()
            S = Stream(A)
            ins = None
            if sc:
                def w0(): A('s_waitcnt vmcnt(3)'); lg.wait(('q', 3))
                mf = [x for ks in range(6) for x in smf(ks)]
                ins = {10: [(w0 if i == 0 else (lambda: lg.wait(('q', 5))) if i == 12 else None, x) for i, x in enumerate(mf)]}
            f = add_proj(S, lg, WB, ACC[par], BOP, va, vn, ins)
            pack = [x for x in proj_pack(ACC[1-par], PK) if not x.startswith('s_nop')]
            e = S.spread_v(8, pack[:12]); e = S.spread_v(e + 1, pack[12:])
            S.spread_v(f[8] + 3, [f'v_add_u32 {vn}, s37, v10'])
            for i, x in enumerate(qwrites(lg, qb)): S.m(f[4] + 2 + i, x)
            S.m(f[5] + 4, 's_cmp_ge_u32 s31, 62', 's_cselect_b32 s29, 0x20000000, s29', 's_add_u32 s30, s24, s38')
            nld = 0
            if sc:
                S.m(3, *koffs)
                for i, x in enumerate(kml): S.m(f[i//2] + 2 + 2*(i % 2), x)
                for i, x in enumerate(kxl): S.m(f[10 + (i*3)//4] + (2, 5)[i % 4 == 1], x)
                S.m(f[15] + 5, 's_load_dword s35, s[4:5], s32 glc')
                nld = 6
            S.m(f[6] + 2, lambda nld=nld: (A(f's_waitcnt vmcnt({nld})'), lg.wait('qw')), 's_barrier')
            dma_fill(A, S, [f[7+i] + 4 for i in range(10)], 's29', 's30')
            if sc:
                for ks in range(6): S.m(f[7 + ks//2] + 2 + 3*(ks & 1), lambda ks=ks, qb=qb: lg.op(f'ds_read_b128 {v(QR+4*ks,4)}, v18 offset:{qb + ks*2048}', ('q', ks)))
                sm = softmax_x(SC, T0)
                slot = f[10] + 5
                for x in sm:
                    heavy = 'permlane' in x or 'exp' in x or 'rcp' in x
                    cur = S.val.get(slot, [])
                    if cur and (heavy or len(cur) >= 2 or any('permlane' in y or 'exp' in y or 'rcp' in y for y in cur) or len(S.mem.get(slot, [])) >= 2):
                        slot += 1
                    S.val.setdefault(slot, []).append(x)
                S.m(slot + 1, pst[0]); S.m(slot + 2, pst[1])
                S.m(slot + 2, 's_mov_b32 s26, s13', 's_mov_b32 s27, s14',
                    f's_add_u32 s12, s12, {32*12288}', f's_add_u32 s13, s13, {32*6144}', f's_add_u32 s14, s14, {32*2560}')
            S.m(f[18] + 2, f's_add_u32 s29, s29, {HB}', 's_mov_b32 s30, s36', 's_mov_b32 s36, s37')
            S.m(f[18] + 3, 's_mov_b32 s37, s38', 's_mov_b32 s38, s30', 's_add_u32 s31, s31, 1')
            S.emit(); lg_next(lg)
            tr.t(1); tr.t(5, True); tr.flush()
        A('s_cmp_lt_u32 s31, 64'); A(f's_cbranch_scc1 {lp}')
        for x in proj_pack(ACC[1], PK): A(x)
        for x in qwrites(lg, 0): x()
        A('s_waitcnt lgkmcnt(0)'); A('s_barrier')
        if sc:
            for ks in range(6): A(f'ds_read_b128 {v(QR+4*ks,4)}, v18 offset:{ks*2048}')
            waits(True)
            for x in koffs + kml: A(x)
            A('s_waitcnt lgkmcnt(0)')
            for ks in range(6):
                A(f's_waitcnt vmcnt({5 - ks})')
                for x in smf(ks): A(x)
            for x in softmax_x(SC, T0) + pst: A(x)
        A('s_endpgm')

def role_vo(A, fail):
    from workers import load_wo
    load_wo(A, 's20', 's21')
    AS = (64, 112); ACC = (160, 176); PK = (192, 200)
    lane_expr(A, 'v10', [(0, 2, 16), (2, 1, 128), (3, 1, 64), (4, 1, 256), (5, 1, 512)])
    A('s_mul_i32 s29, s21, 3072')
    lane_expr(A, 'v9', [(0, 6, 16)], 's29')
    A('s_mul_i32 s24, s20, 12288'); A(f's_add_u32 s24, s24, {O_VX}')
    A('s_lshl_b32 s25, s20, 9'); A(f's_add_u32 s25, s25, {O_VO}')
    A('s_lshl_b32 s23, s20, 7'); A(f's_add_u32 s32, s23, {O_MB + MB_FLAGS + F_V*128}')
    A('s_lshr_b32 s23, s20, 3'); A('s_lshl_b32 s23, s23, 7'); A('s_and_b32 s26, s20, 7'); A('s_lshl_b32 s26, s26, 2'); A('s_add_u32 s23, s23, s26')
    A(f's_add_u32 s23, s23, {O_MB + MB_FLAGS + F_O*128}')
    lane0_off(A, 'v16', 's23')
    A('s_mov_b32 s33, 0')
    A(f's_mul_i32 s26, s21, {20*16384}')
    lane_expr(A, 'v11', [(3, 2, 16384), (5, 1, 128), (0, 3, 16)], 's26')
    dma = [f'buffer_load_dwordx4 v9, {WS}, s24 offen offset:{1024*i} sc1 lds' for i in range(3)]
    def epi(ti):
        acc, pk = ACC[ti & 1], PK[ti & 1]
        return [f'v_cvt_pk_bf16_f32 {v(pk+i)}, {v(acc+2*i)}, {v(acc+2*i+1)}' for i in range(8)], \
               [f'buffer_store_dwordx4 {v(pk,4)}, v11, {WS}, s28 offen sc1', f'buffer_store_dwordx4 {v(pk+4,4)}, v11, {WS}, s28 offen offset:256 sc1']
    for k in range(2):
        flag_wait(A, 4, 's32', k, 's33', fail)
        A(f's_add_u32 m0, s29, {12288*k}')
        for x in dma: A(x)
        A(f's_add_u32 s24, s24, {32*12288}')
        if k == 0:
            A('s_waitcnt vmcnt(0)'); A('s_barrier')
            for ks in range(12): A(f'ds_read_b128 {v(AS[0]+4*ks,4)}, v10 offset:{1024*ks}')
    A('s_mov_b32 s31, 0')
    A('s_mov_b32 s28, 0x20000000')
    tr = Tr(A, 'v1', 'v2', 'v255')
    lp = A.lab('vo'); tails = []
    A(f'{lp}:')
    for par in range(2):
        cur, nxt = AS[par], AS[1-par]
        S = Stream(A)
        for T in range(5):
            ti = par*5 + T
            d = v(ACC[ti & 1], 16)
            for ks in range(12):
                S.main(f'v_mfma_f32_32x32x16_bf16 {d}, {v(cur+4*ks,4)}, {a((T*12+ks)*4,4)}, {d if ks else 0}', (lambda: A('s_waitcnt lgkmcnt(0)')) if T == 0 and ks == 0 else None)
            cv, st = epi(ti - 1)
            b = 12*T
            S.m(b, 's_nop 3'); S.m(b + 1, 's_nop 3')
            S.spread_v(b + 3, cv[:4], per=2); S.m(b + 5, st[0]); S.spread_v(b + 6, cv[4:], per=2); S.m(b + 8, st[1])
            S.m(b + 9, f's_add_u32 s28, s25, {T*65536}')
        S.m(10, 's_load_dword s33, s[4:5], s32 glc')
        S.m(22, 's_add_u32 s26, s31, 2', 's_min_u32 s26, s26, 63', 's_cmp_ge_u32 s31, 62', 's_cselect_b32 s24, 0x20000000, s24')
        S.spread_v(22, ['v_mov_b32 v17, s31'])
        sp = A.lab('vsp'); bk = A.lab('vbk')
        S.m(34, 's_cmp_gt_u32 s33, s26', f's_cbranch_scc0 {sp}', f'{bk}:')
        def tail(sp=sp, bk=bk):
            A(f'{sp}:'); A('s_waitcnt lgkmcnt(0)'); flag_wait(A, 4, 's32', 's26', 's33', fail); A(f's_branch {bk}')
        tails.append(tail)
        S.m(35, lambda: tr.t(0), 's_waitcnt vmcnt(4)', 's_barrier', lambda: (tr.t(1), tr.t(5, True)), f's_add_u32 m0, s29, {12288*par}')
        S.m(38, f'buffer_store_dword v17, v16, {WS}, 0 offen sc1')
        for i, s0 in enumerate((39, 42, 45)): S.m(s0, dma[i])
        for ks, s0 in enumerate((36, 37, 40, 43, 46, 47, 48, 49, 50, 51, 52, 54)):
            S.m(s0, f'ds_read_b128 {v(nxt+4*ks,4)}, v10 offset:{12288*(1-par) + 1024*ks}')
        S.m(58, f's_add_u32 s24, s24, {32*12288}', 's_add_u32 s25, s25, 1310720', 's_add_u32 s31, s31, 1', 's_cmp_lt_u32 s31, 64')
        S.emit()
        if common.TRACE: tr.flush(); A('s_cmp_lt_u32 s31, 64')
    A(f's_cbranch_scc1 {lp}')
    cv, st = epi(9)
    for x in cv + st: A(x)
    A('s_waitcnt vmcnt(0) lgkmcnt(0)'); A('s_barrier')
    A('v_mov_b32 v17, 64')
    A(f'buffer_store_dword v17, v16, {WS}, 0 offen sc1')
    A('s_endpgm')
    for t in tails: t()
```

```python
import sys
from common import *
import small, workers, workers2, gemm, rec, rec2

HEADER = open('interleave_layers__memory_aug_recurrent_mem_tr__mixer_token_mlp__prompt.s.ref').read().split('; Override launch')[0]

def prologue(A, nwg):
    A(f's_cmp_ge_u32 s2, {nwg}')
    ok = A.lab('go')
    A(f's_cbranch_scc0 {ok}')
    A('s_endpgm')
    A(f'{ok}:')
    srd(A, 4, KA_WS, WS_SIZE)
    wave_id(A, 's21')

NINIT = 35
def mb_init_task(A, st):
    fl = A.lab('mbf'); go = A.lab('mbgo'); end = A.lab('mbend')
    lane_expr(A, 'v3', [(0, 6, 16)])
    A(f's_lshl_b32 s91, {st}, 14'); A(f's_cmp_eq_u32 {st}, 34'); A(f's_cselect_b32 s91, {MB_FLAGS}, s91')
    A(f's_cmp_ge_u32 {st}, 32'); A(f's_cbranch_scc1 {fl}')
    for i in range(32): A(f'v_mov_b32 {v(16+i)}, -1')
    A(f's_sub_u32 s92, {st}, 6'); A(f's_min_u32 s92, s92, {st}')
    A(f's_cmp_ge_u32 s92, 2'); A(f's_cbranch_scc1 {end}')
    lane_expr(A, 'v2', [(0, 3, 1280), (3, 3, 16)])
    A(f's_lshl_b32 s90, s92, 10')
    for i in range(2): A(f'buffer_load_dwordx4 {v(16+4*i,4)}, v2, s[16:19], s90 offen offset:{128*i}')
    A('s_waitcnt vmcnt(0)')
    for i in range(8): A(f'v_min_u32 {v(16+i)}, -2, {v(16+i)}')
    A(f's_cmp_eq_u32 s92, 1'); A(f's_cbranch_scc1 {end}')
    for i in range(2, 8): A(f'buffer_load_dwordx4 {v(16+4*i,4)}, v2, s[16:19], s90 offen offset:{128*i}')
    A('s_waitcnt vmcnt(0)')
    for i in range(8, 32): A(f'v_min_u32 {v(16+i)}, -2, {v(16+i)}')
    A(f's_branch {end}')
    A(f'{fl}:')
    for i in range(32): A(f'v_mov_b32 {v(16+i)}, 0')
    A(f'{end}:')
    A(f's_add_u32 s90, s91, {O_MB}')
    for i in range(16):
        A(f'buffer_store_dwordx4 {v(16+4*(i%8),4)}, v3, {WS}, s90 offen offset:{1024*(i%4)}')
        if i % 4 == 3: A('s_add_u32 s90, s90, 4096')

def probe_task(A):
    lp = A.lab('pr')
    A('s_mov_b32 s40, -1'); A('s_mov_b32 s41, -1'); A('s_mov_b32 s42, 0')
    A(f'{lp}:')
    for k in range(2):
        A('s_and_b32 s43, s42, 1'); A('s_lshl_b32 s43, s43, 12'); A(f's_add_u32 s43, s43, {O_MB + MB_PROBE + 8192*k}')
        A('s_memtime s[44:45]'); A('s_waitcnt lgkmcnt(0)')
        A('s_load_dword s48, s[4:5], s43 glc'); A('s_waitcnt lgkmcnt(0)')
        A('s_memtime s[46:47]'); A('s_waitcnt lgkmcnt(0)')
        A('s_sub_u32 s44, s46, s44'); A(f's_min_u32 s{40+k}, s{40+k}, s44')
    A('s_add_u32 s42, s42, 1'); A('s_cmp_lt_u32 s42, 8'); A(f's_cbranch_scc1 {lp}')
    A('s_cmp_lt_u32 s41, s40'); A('s_cselect_b32 s40, 0x2000, 0')
    A('v_mov_b32 v2, s40'); A(f'v_mov_b32 v3, {O_MB + MB_PAR}')
    A(f'buffer_store_dword v2, v3, {WS}, 0 offen')

def k_prep():
    A = Asm(); A.uid = 1000
    prologue(A, 256)
    other = A.lab('other')
    A(f's_cmp_ge_u32 s2, 160'); A(f's_cbranch_scc1 {other}')
    srd(A, 8, KA_WO, SZ_W); srd(A, 12, KA_WV, SZ_W)
    A('s_and_b32 s20, s2, 31'); A('s_lshr_b32 s22, s2, 5'); A('s_lshl_b32 s22, s22, 2')
    A('s_waitcnt lgkmcnt(0)')
    workers.role_wo(A, 'bm', None)
    A(f'{other}:')
    srd(A, 8, KA_X, SZ_X); srd(A, 12, KA_W1, SZ_W1); srd(A, 16, KA_MEM0, 10240); srd(A, 24, KA_W2, SZ_W1)
    A('s_sub_u32 s20, s2, 160'); A('s_lshl_b32 s20, s20, 2'); A('s_add_u32 s20, s20, s21')
    A('s_mul_i32 s23, s21, 16384')
    A('s_waitcnt lgkmcnt(0)')
    np_ = A.lab('np')
    A(f's_cmp_lg_u32 s20, {(248-160)*4 + 3}'); A(f's_cbranch_scc1 {np_}')
    probe_task(A)
    A(f'{np_}:')
    lp = A.lab('tl'); nx = A.lab('nx'); l1 = A.lab('t1'); l2 = A.lab('t2'); l3 = A.lab('t3')
    A(f'{lp}:')
    A('s_cmp_ge_u32 s20, 256'); A(f's_cbranch_scc1 {l1}')
    small.ln_task(A, 'x', 's20'); A(f's_branch {nx}')
    A(f'{l1}:'); A('s_cmp_ge_u32 s20, 291'); A(f's_cbranch_scc1 {l2}')
    A('s_sub_u32 s22, s20, 256'); mb_init_task(A, 's22'); A(f's_branch {nx}')
    A(f'{l2}:'); A(f's_cmp_ge_u32 s20, {291+768}'); A(f's_cbranch_scc1 {l3}')
    A('s_sub_u32 s22, s20, 291'); small.wt_task(A, 's22', 's[12:15]', 1536, O_W1T, 's23'); A(f's_branch {nx}')
    A(f'{l3}:')
    A(f's_sub_u32 s22, s20, {291+768}'); small.wt_task(A, 's22', 's[24:27]', 2048, O_W2T, 's23')
    A(f'{nx}:')
    A('s_add_u32 s20, s20, 384'); A(f's_cmp_lt_u32 s20, {291+1536}'); A(f's_cbranch_scc1 {lp}')
    A('s_endpgm')
    return A

def k_attn(roles='SCKVOQ', parity=0):
    A = Asm(); A.uid = 2000
    prologue(A, 256)
    fail = 'attn_fail'
    if parity < 2: A(f's_mov_b32 s19, {parity*8192}')
    else:
        A('s_waitcnt lgkmcnt(0)'); A(f's_mov_b32 s18, {O_MB + MB_PAR}')
        A('s_load_dword s19, s[4:5], s18'); A('s_waitcnt lgkmcnt(0)'); A('s_and_b32 s19, s19, 0x2000')
    A('s_and_b32 s16, s2, 7'); A('s_lshr_b32 s17, s2, 3')
    lS, lC, lW, lO, lQ, lX = [A.lab(n) for n in ('rS', 'rC', 'rW', 'rO', 'rQ', 'rX')]
    A('s_cmp_eq_u32 s16, 0'); A(f's_cbranch_scc1 {lS}')
    A('s_cmp_lt_u32 s16, 4'); A(f's_cbranch_scc1 {lC}')
    A('s_sub_u32 s20, s16, 4'); A('s_lshl_b32 s20, s20, 3'); A('s_and_b32 s18, s17, 7'); A('s_add_u32 s20, s20, s18')
    A('s_lshr_b32 s18, s17, 3')
    A('s_cmp_eq_u32 s18, 2'); A(f's_cbranch_scc1 {lO}')
    A('s_cmp_eq_u32 s18, 3'); A(f's_cbranch_scc1 {lQ}')
    if 'K' in roles:
        A('s_lshl_b32 s22, s18, 3'); A(f's_add_u32 s22, s22, {KA_WK}')
        A('s_load_dwordx2 s[8:9], s[0:1], s22'); A(f's_mov_b32 s10, {SZ_W}'); A('s_mov_b32 s11, 0x20000')
        A(f's_mul_i32 s22, s18, {O_VX - O_KX}'); A(f's_add_u32 s22, s22, {O_KX}')
        A(f's_mul_i32 s23, s18, {(F_V - F_K)}'); A('s_add_u32 s23, s23, s20'); A('s_lshl_b32 s23, s23, 7'); A(f's_add_u32 s23, s23, {O_MB + MB_FLAGS + F_K*128}')
        A('s_waitcnt lgkmcnt(0)')
        workers2.role_proj(A, fail)
    else: A('s_endpgm')
    A(f'{lO}:')
    if 'O' in roles:
        srd(A, 8, KA_WO, SZ_W); A('s_waitcnt lgkmcnt(0)')
        workers2.role_vo(A, fail)
    else: A('s_endpgm')
    A(f'{lQ}:')
    if 'Q' in roles:
        srd(A, 8, KA_WQ, SZ_W); A('s_waitcnt lgkmcnt(0)')
        workers2.role_wq(A, fail)
    else: A('s_endpgm')
    A(f'{fail}:')
    A(f's_load_dwordx2 s[8:9], s[0:1], {KA_DBG}')
    A('v_mov_b32 v1, 0'); A('v_mov_b32 v2, s2'); A('v_or_b32 v2, 0x10000, v2'); A('v_mov_b32 v3, s31')
    A('s_waitcnt vmcnt(0) lgkmcnt(0)')
    A('global_store_dwordx2 v1, v[2:3], s[8:9]')
    A('s_endpgm')
    A(f'{lC}:')
    if 'C' in roles:
        A('s_sub_u32 s20, s16, 1'); A('s_mul_i32 s20, s20, 27'); A('s_add_u32 s20, s20, s17')
        A('s_cmp_ge_u32 s17, 27'); A(f's_cbranch_scc1 {lX}')
        A('s_cmp_ge_u32 s20, 80'); A(f's_cbranch_scc1 {lX}')
        A('s_waitcnt lgkmcnt(0)')
        rec2.role_c(A, fail)
    A(f'{lX}:')
    A('s_endpgm')
    A(f'{lS}:')
    if 'S' in roles:
        srd(A, 8, KA_WQ, SZ_W); srd(A, 12, KA_WK, SZ_W)
        A('s_mov_b32 s20, s17'); A('s_waitcnt lgkmcnt(0)')
        rec2.role_s(A, fail)
    else: A('s_endpgm')
    return A

def k_pz():
    A = Asm(); A.uid = 3000
    prologue(A, 512)
    A('s_and_b32 s20, s2, 7'); A('s_lshr_b32 s23, s2, 6'); A('s_lshl_b32 s23, s23, 3'); A('s_add_u32 s20, s20, s23')
    A('s_lshr_b32 s22, s2, 3'); A('s_and_b32 s22, s22, 7')
    A('s_waitcnt lgkmcnt(0)')
    gemm.task_pz(A); A('s_endpgm')
    return A

def k_ln(mode, uid):
    A = Asm(); A.uid = uid
    n = 256 + (35 if mode == 'h' else 0)
    prologue(A, n)
    if mode == 'h':
        srd(A, 16, KA_MEM0, 10240)
        l = A.lab('ln')
        A('s_waitcnt lgkmcnt(0)')
        A('s_cmp_lt_u32 s2, 256'); A(f's_cbranch_scc1 {l}')
        A('s_sub_u32 s22, s2, 256'); mb_init_task(A, 's22'); A('s_endpgm')
        A(f'{l}:')
    else: A('s_waitcnt lgkmcnt(0)')
    small.ln_task(A, mode, 's2', 0); A('s_endpgm')
    return A

def gtile(A):
    A('s_and_b32 s20, s2, 7'); A('s_lshl_b32 s20, s20, 2'); A('s_lshr_b32 s23, s2, 6'); A('s_add_u32 s20, s20, s23')
    A('s_lshr_b32 s22, s2, 3'); A('s_and_b32 s22, s22, 7')

def k_g1():
    A = Asm(); A.uid = 5000
    prologue(A, 256); srd(A, 8, KA_B1, 3072); gtile(A); A('s_waitcnt lgkmcnt(0)')
    gemm.task_g1(A); A('s_endpgm')
    return A

def k_g2(final):
    A = Asm(); A.uid = 6000 + 500*final
    prologue(A, 256); srd(A, 8, KA_B2, 4096); srd(A, 12, KA_OUT, SZ_X); gtile(A); A('s_waitcnt lgkmcnt(0)')
    gemm.task_g2(A, final); A('s_endpgm')
    return A

def assemble(launches, kernels):
    t = HEADER
    for (n, g, b, l) in launches: t += f'; @launch kernel={n} grid=({g},1,1) block=({b},1,1) lds={l}\n'
    t += '.amdgcn_target "amdgcn-amd-amdhsa--gfx950"\n.text\n'
    for n, (A, tot, acc) in kernels.items(): t += kernel_text(n, A)
    t += '.section .rodata,"a"\n'
    for n, (A, tot, acc) in kernels.items(): t += '.p2align 6\n' + kd(n, tot, acc)
    return t

ROLES = 'SCKVOQ'
def full(parity=0):
    K = {'prep_kernel': (k_prep(), 512, 256), 'attn_kernel': (k_attn(ROLES, parity), 512, 256), 'pz_kernel': (k_pz(), 512, 256),
         'lnt_kernel': (k_ln('t', 4000), 256, 256), 'lnh_kernel': (k_ln('h', 4500), 256, 256),
         'g1_kernel': (k_g1(), 512, 256), 'g2a_kernel': (k_g2(0), 512, 256), 'g2b_kernel': (k_g2(1), 512, 256)}
    LA = [('attn_kernel', 256, 256, 163840), ('pz_kernel', 512, 256, 43008), ('lnt_kernel', 256, 64, 10496), ('g1_kernel', 256, 256, 66560)]
    L = [('prep_kernel', 256, 256, 163840)] + LA + [('g2a_kernel', 256, 256, 86016), ('lnh_kernel', 291, 64, 0)] + LA + [('g2b_kernel', 256, 256, 86016)]
    return assemble(L, K)

if __name__ == '__main__':
    out = sys.argv[1] if len(sys.argv) > 1 else 'interleave_layers__memory_aug_recurrent_mem_tr__mixer_token_mlp__prompt.s'
    par = int(sys.argv[2]) if len(sys.argv) > 2 else 2
    import common
    common.TRACE = len(sys.argv) > 3 and sys.argv[3] == 'trace'
    for kv in sys.argv[4:]:
        k, val = kv.split('=')
        if k == 'roles': ROLES = val
        else: setattr(rec2.P, k, int(val))
    t = full(par)
    open(out, 'w').write(t)
    print(len(t), 'bytes', t.count('\n'), 'lines')
```

```python
from hx import *
def gen(mask_expr, ncu_max, op, flag, iters, region, depth):
    ld = op == 'ld'
    body = []
    for j in range(depth):
        if op == 'dma': body.append(f'    buffer_load_dwordx4 v1, s[8:11], s22 offen {flag} lds')
        elif op == 'ld2': body.append(f'    buffer_load_dwordx2 v[{64+4*j}:{64+4*j+1}], v2, s[8:11], s22 offen {flag}')
        elif op == 'ld1': body.append(f'    buffer_load_dword v{64+4*j}, v3, s[8:11], s22 offen {flag}')
        elif ld: body.append(f'    buffer_load_dwordx4 v[{64+4*j}:{64+4*j+3}], v1, s[8:11], s22 offen {flag}')
        else: body.append(f'    buffer_store_dwordx4 v[4:7], v1, s[8:11], s22 offen {flag}')
        body.append(f'    s_add_u32 s22, s22, 4096\n    s_and_b32 s22, s22, {region-1}')
        body.append(f'    s_waitcnt vmcnt({depth-1})')
    body = '\n'.join(body)
    return f'''; @launch grid=(256,1,1) block=(256,1,1) lds=0
.amdgcn_target "amdgcn-amd-amdhsa--gfx950"
.text
.globl t_kernel
.p2align 8
.type t_kernel,@function
t_kernel:
    s_load_dwordx2 s[4:5], s[0:1], 0
    s_load_dwordx2 s[8:9], s[0:1], 8
    s_and_b32 s3, s2, 7
    s_lshl_b32 s12, 1, s3
    s_and_b32 s12, s12, {mask_expr}
    s_cmp_eq_u32 s12, 0
    s_cbranch_scc1 END
    s_lshr_b32 s13, s2, 3
    s_cmp_ge_u32 s13, {ncu_max}
    s_cbranch_scc1 END
    s_waitcnt lgkmcnt(0)
    s_mov_b32 s10, 0x10000000
    s_mov_b32 s11, 0x20000
    s_mul_i32 s17, s2, {region}
    v_lshlrev_b32 v1, 4, v0
    v_add_u32 v1, s17, v1
    v_lshlrev_b32 v2, 3, v0
    v_add_u32 v2, s17, v2
    v_lshlrev_b32 v3, 2, v0
    v_add_u32 v3, s17, v3
    v_lshrrev_b32 v8, 6, v0
    s_nop 1
    v_readfirstlane_b32 s14, v8
    s_lshl_b32 m0, s14, 10
    v_mov_b32 v4, 1
    v_mov_b32 v5, 1
    v_mov_b32 v6, 1
    v_mov_b32 v7, 1
    s_mov_b32 s21, 0
    s_mov_b32 s22, 0
    s_memrealtime s[6:7]
LOOP:
{body}
    s_add_u32 s21, s21, 1
    s_cmp_lt_u32 s21, {iters}
    s_cbranch_scc1 LOOP
    s_waitcnt vmcnt(0)
    s_memrealtime s[18:19]
    s_waitcnt lgkmcnt(0)
    s_sub_u32 s18, s18, s6
    v_mov_b32 v4, s18
    s_lshl_b32 s3, s2, 2
    v_mov_b32 v1, s3
    global_store_dword v1, v4, s[4:5]
    s_waitcnt vmcnt(0)
END:
    s_endpgm
.section .rodata,"a"
.p2align 6
''' + kd('t_kernel', 256, 40, accum=256, total=512)
on_gpu = os.path.exists('/dev/kfd')
if on_gpu:
    out = DeviceBuffer(4096); B = DeviceBuffer(0x10000000)
for (mask, ncu, op, flag, region, depth) in [(1, 1, 'ld', 'sc1', 1<<16, 32), (1, 1, 'dma', 'sc1', 1<<16, 32), (1, 1, 'dma', '', 1<<14, 32), (1, 32, 'dma', 'sc1', 1<<16, 32), (1, 1, 'ld2', 'sc1', 1<<16, 32), (1, 1, 'ld1', 'sc1', 1<<16, 32), (1, 8, 'dma', 'sc1', 1<<20, 32)]:
    iters = 32
    co = build(gen(mask, ncu, op, flag, iters, region, depth), 't_kernel', 2, 'mb_t', launch_lists=False)
    if not on_gpu: continue
    kern = AsmKernel(co, 't_kernel')
    res = []
    for rep in range(3):
        memset(out, 0); sync()
        kern.launch((256,1,1), (256,1,1), struct.pack('<2Q', out.ptr, B.ptr), shared_mem=8192); sync()
        r = download(out, np.uint32, 256); r = r[r > 0]
        t = r.mean() * 10e-9
        res.append('%.1f cycles per wave-instr (at 2.4GHz)' % (t*2.4e9/(iters*depth*4)))
    print(f'xcdmask {mask:#x} ncu/xcd {ncu} {op} [{flag}] region/CU {region>>10}KB depth {depth}:', ' | '.join(res[1:]), flush=True)
    kern.unload()
```
